```python
import torch

def _softmax(x, axis=-1):
    return torch.softmax(x, dim=axis)
def _gelu(x):
    return torch.nn.functional.gelu(x, approximate="tanh")
def _silu(x):
    return torch.nn.functional.silu(x)
def _sigmoid(x):
    return torch.sigmoid(x)
def _layernorm(x, axis=-1, eps=1e-5):
    m = x.mean(dim=axis, keepdim=True)
    v = x.var(dim=axis, keepdim=True, unbiased=False)
    return (x - m) / torch.sqrt(v + eps)
def _scatter_add(tgt, idx, src, axis=0):
    return tgt.clone().index_add_(axis, idx, src)
def _segment_sum(src, seg, n):
    out = torch.zeros((n,) + src.shape[1:], dtype=src.dtype)
    return out.index_add_(0, seg, src)
def _pad(x, pw):
    flat = tuple(v for pair in reversed(pw) for v in pair)
    return torch.nn.functional.pad(x, flat)

kernel_name = 'standalone__gqa_softmax__near_ridge'

def setup_inputs():

    _w = (lambda a: (lambda t: t.to(torch.bfloat16) if t.is_floating_point() else t)(torch.as_tensor(a)))
    B, Hq, Hkv, Sq, Sk, D = 32, 32, 4, 192, 512, 128
    return {
        "q": _w((lambda *s: torch.randn(*s, dtype=torch.bfloat16) * 0.8)(B, Hq, Sq, D)),
        "k": _w((lambda *s: torch.randn(*s, dtype=torch.bfloat16) * 0.8)(B, Hkv, Sk, D)),
        "v": _w((lambda *s: torch.randn(*s, dtype=torch.bfloat16) * 0.05)(B, Hkv, Sk, D)),
    }

def reference(q, k, v):
    B, Hq, Sq, D = q.shape
    Hkv = k.shape[1]
    rep = Hq // Hkv
    k = (lambda x, n, axis: torch.repeat_interleave(x, n, dim=axis))(k, rep, axis=1)
    v = (lambda x, n, axis: torch.repeat_interleave(x, n, dim=axis))(v, rep, axis=1)
    scale = D ** -0.5
    scores = torch.einsum("bhqd,bhkd->bhqk", q, k) * scale
    p = _softmax(scores, axis=-1)
    return torch.einsum("bhqk,bhkd->bhqd", p, v)
```

```python
import re

def regs(t, lo, n=1):
    return [(t, lo + i) for i in range(n)]

def R(t, lo, n=1):
    return f'{t}{lo}' if n == 1 else f'{t}[{lo}:{lo+n-1}]'

class I:
    __slots__ = ('txt', 'kind', 'rd', 'wr', 'cost', 'grp', 'need', 'tok', 'srcc', 'note')
    def __init__(self, txt, kind, rd=(), wr=(), cost=1, grp=None, need=(), tok=None, srcc=()):
        self.txt = txt; self.kind = kind; self.rd = list(rd); self.wr = list(wr)
        self.cost = cost; self.grp = grp; self.need = list(need); self.tok = tok; self.srcc = list(srcc)
        self.note = ''
    def cls(self):
        if self.kind in ('salu', 'wait', 'barrier', 'nop'): return 0
        if self.kind in ('ds_rd', 'ds_wr', 'vm_ld', 'vm_dma', 'vm_st'): return 1
        return 2

def mfma16(d, a, b, c):
    ct = '0' if c is None else R(c[0], c[1], 4)
    rd = regs(a[0], a[1], 4) + regs(b[0], b[1], 4)
    sc = [] if c is None else regs(c[0], c[1], 4)
    return I(f'v_mfma_f32_16x16x32_bf16 {R(d[0],d[1],4)}, {R(a[0],a[1],4)}, {R(b[0],b[1],4)}, {ct}', 'mfma',
             rd=rd, wr=regs(d[0], d[1], 4), srcc=sc)

def valu(txt, rd, wr, cost=1, kind='valu'):
    return I(txt, kind, rd=[('v', x) for x in rd], wr=[('v', x) for x in wr], cost=cost)

def salu(txt, wr=(), rd=()):
    return I(txt, 'salu', rd=rd, wr=wr)

VM = ('vm_ld', 'vm_dma', 'vm_st')
DS = ('ds_rd', 'ds_wr')

def insert_waits(seq, verbose=False):
    out = []
    vmq = []
    dsq = []
    pend = {}
    tokpos = {}
    grp_members = {}
    for ins in seq:
        if ins.grp is not None:
            grp_members.setdefault(ins.grp, []).append(ins)
    issued = set()
    done = set()
    def covered(op): return id(op) in done
    nwaits = 0
    for ins in seq:
        needs = []
        for r in ins.rd + ins.wr + ins.srcc:
            op = pend.get(r)
            if op is not None and not covered(op) and op is not ins:
                needs.append(op)
        for t in ins.need:
            for op in tokpos.get(t, []):
                if not covered(op): needs.append(op)
        if needs:
            ext = []
            for op in needs:
                ext.append(op)
                if op.grp is not None:
                    for m in grp_members[op.grp]:
                        if id(m) in issued and not covered(m): ext.append(m)
            pos = len(out)
            k = len(out) - 1
            ids = set(id(o) for o in ext)
            hoist = None
            while k >= 0:
                o = out[k]
                if o.kind == 'mfma': hoist = k + 1; break
                if id(o) in ids or o.kind in ('label', 'branch', 'barrier'): break
                k -= 1
            if hoist is not None: pos = hoist
            after = set(id(o) for o in out[pos:])
            def cnt(q, kinds):
                tg = [i for i, o in enumerate(q) if id(o) in ids]
                if not tg: return None
                last = max(tg)
                n = sum(1 for o in q[last + 1:] if id(o) not in after)
                return last, n
            parts = []
            a = cnt(vmq, VM)
            if a is not None:
                last, n = a
                assert n <= 63, 'vmcnt overflow'
                parts.append(f'vmcnt({n})')
                for o in vmq[:last + 1]: done.add(id(o))
                del vmq[:last + 1]
            a = cnt(dsq, DS)
            if a is not None:
                last, n = a
                if n > 15:
                    last += n - 15; n = 15
                parts.append(f'lgkmcnt({n})')
                for o in dsq[:last + 1]: done.add(id(o))
                del dsq[:last + 1]
            if parts:
                w = I('s_waitcnt ' + ' '.join(parts), 'wait')
                out.insert(pos, w); nwaits += 1
        out.append(ins)
        issued.add(id(ins))
        if ins.kind in VM:
            vmq.append(ins)
            assert len(vmq) <= 63, f'too many outstanding vm ops at {ins.txt}'
        if ins.kind in DS: dsq.append(ins)
        if ins.kind in ('vm_ld', 'ds_rd'):
            for r in ins.wr: pend[r] = ins
        if ins.tok is not None: tokpos.setdefault(ins.tok, []).append(ins)
        if ins.kind == 'wait':
            m = re.search(r'vmcnt\((\d+)\)', ins.txt)
            if m:
                n = int(m.group(1))
                while len(vmq) > n: done.add(id(vmq.pop(0)))
            m = re.search(r'lgkmcnt\((\d+)\)', ins.txt)
            if m:
                n = int(m.group(1))
                while len(dsq) > n: done.add(id(dsq.pop(0)))
    if verbose: print('waits inserted', nwaits)
    return out

def states(ins):
    if ins.kind == 'nop':
        return int(ins.txt.split()[1]) + 1
    if ins.kind == 'label': return 0
    return 1

def fix_hazards(seq, verbose=False):
    out = []
    npad = 0
    for ins in seq:
        need = 0
        dist = 0
        isv = ins.kind in ('valu', 'trans', 'perm')
        ismem = ins.kind in VM + DS
        rd = set(ins.rd); wr = set(ins.wr); sc = set(ins.srcc)
        for p in reversed(out):
            if dist >= 10: break
            pw = set(p.wr)
            req = 0
            pv = p.kind in ('valu', 'trans', 'perm')
            if pv and ins.kind == 'mfma' and pw & (rd | sc): req = max(req, 2)
            if p.kind == 'mfma':
                if isv and pw & (rd | wr): req = max(req, 8)
                if ismem and pw & (rd | wr): req = max(req, 8)
                if ins.kind == 'mfma':
                    if pw & rd: req = max(req, 8)
                    if pw & sc and pw != sc: req = max(req, 6)
                if isv and set(p.srcc) & wr: req = max(req, 3)
            if p.kind == 'trans' and isv and ins.kind != 'trans' and pw & rd: req = max(req, 1)
            if p.kind == 'trans' and ismem and pw & rd: req = max(req, 1)
            if pv and ins.kind == 'perm' and pw & rd: req = max(req, 2)
            if p.kind == 'salu' and ('s', 'm0') in pw and ins.kind == 'vm_dma': req = max(req, 1)
            if p.kind in ('vm_st', 'ds_wr') and isv and set(p.rd) & wr: req = max(req, 2)
            if p.kind in ('vm_st', 'ds_wr') and ins.kind in ('vm_ld', 'ds_rd', 'mfma') and set(p.rd) & wr: req = max(req, 2)
            if req - dist > need: need = req - dist
            dist += states(p)
        if need > 0:
            out.append(I(f's_nop {need-1}', 'nop')); npad += 1
            if verbose: print('pad', need, 'before', ins.txt)
        out.append(ins)
    if verbose: print('hazard pads', npad)
    return out

class Gaps:
    CAP = 2
    def __init__(self):
        self.bb = []
        self.g = []
        self.extra = []
    def add(self, m):
        self.bb.append(m); self.g.append([[], [], []]); self.extra.append(0)
        return len(self.bb) - 1
    def load(self, k):
        s, m, v = self.g[k]
        c = max(0, len(s) - 1)
        c += sum(x.cost for x in m) + sum(x.cost for x in v)
        return c
    def put(self, k, ins):
        self.g[k][ins.cls()].append(ins)
    def inc(self, k, ins):
        if ins.cls() == 0: return 0 if not self.g[k][0] else 1
        return ins.cost
    def place(self, items, lo, hi, spread=True):
        assert lo <= hi, (lo, hi, items[0].txt)
        n = hi - lo + 1
        bonus = [0] * n
        total = sum(x.cost for x in items if x.cls() != 0)
        free = [max(0, self.CAP - self.load(lo + i)) for i in range(n)]
        F = sum(free)
        over = max(0, total - F)
        while True:
            bonus = [0] * n
            for j in range(over):
                bonus[(j * n // max(over, 1) + (n // (2 * over) if over <= n else 0)) % n if over <= n else j % n] += 1
            cap = [free[i] + bonus[i] for i in range(n)]
            capsum = sum(cap)
            used = [0] * n
            sal = [len(self.g[lo + i][0]) for i in range(n)]
            res = []
            cur = 0; prevcls = -1; ok = True
            cum = []
            s = 0
            for i in range(n):
                cum.append(s); s += cap[i]
            donecost = 0
            for x in items:
                c = x.cls()
                k = cur
                if c < prevcls: k = cur + 1
                if spread and total > 0 and capsum > total and c != 0:
                    target = donecost * capsum / total
                    while k < n - 1 and cum[k] + cap[k] <= target - 1e-9: k += 1
                while k < n:
                    need = x.cost if c != 0 else (0 if sal[k] == 0 else 1)
                    room = cap[k] - used[k]
                    if need <= room or (need > 2 and room >= 2 and used[k] == 0) : break
                    k += 1
                if k >= n: ok = False; break
                need = x.cost if c != 0 else (0 if sal[k] == 0 else 1)
                used[k] += need
                if c == 0: sal[k] += 1
                res.append(k);
                if k != cur: prevcls = -1
                cur = k; prevcls = max(prevcls, c)
                if c != 0: donecost += x.cost
            if ok: break
            if spread and over == 0 and capsum > total:
                spread = False
                continue
            over += 1
            assert over < 40 * n + 400, ('cannot place', items[0].txt, lo, hi)
        for x, k in zip(items, res): self.put(lo + k, x)
        return [lo + k for k in res]
    def linear(self):
        o = []
        for m, (s, mm, v) in zip(self.bb, self.g):
            o.append(m); o += s; o += mm; o += v
        return o
    def est_cycles(self):
        return sum(max(16, 8 + 4 * self.load(k)) for k in range(len(self.bb)))
```

```python
import sys, math, struct, argparse
from asmlib import *

NAME = 'standalone__gqa_softmax__near_ridge'
def f2u(x): return struct.unpack('<I', struct.pack('<f', x))[0]
CSC = f2u(math.log2(math.e) / math.sqrt(128.0))

V_TID = 0
V_QO = 1
V_KG = 3
V_KW = 5
V_VG = 6
V_BAD = 7
V_KA = 8
V_VA = 16
V_ONE = 20
V_S = 24
V_P = 40
V_L = 48
V_O = 64
V_KR = 192
V_T = 240
V_C = 248
V_ST0 = 249; V_ST1 = 250
V_X = 251
A_Q = 0
A_K = 128
A_V = 192
S_Q, S_K, S_V, S_O = 8, 12, 16, 20
S_WV = 24
S_WAVE = 25
S_TILE = 32
LDS_K = 32768
L_LO = 0x27800000
L_RANGE = 0x57800000 - L_LO

def gen(off=(0, 0, 0, 0), DV=4, DK=4, DQ=5, stamps=False, qnt=True, ont=True, verbose=False):
    NKB = DK + 1
    assert V_KR + 8 * NKB <= V_T
    T = 48 + max(off)
    active = [[s for s in range(4) if off[s] <= t < off[s] + 48] for t in range(T)]
    per = [(t, s) for t in range(T) for s in active[t]]
    NP = len(per)
    first = {}
    for i, (t, s) in enumerate(per): first.setdefault(t, i)
    rnd = lambda t, s: (t - off[s]) // 16
    qreg = lambda s, r: A_Q + 64 * (r % 2) + 16 * s
    Sreg = lambda i, kb: V_S + 8 * (i % 2) + 4 * kb
    Preg = lambda i: V_P + 4 * (i % 2)
    Oreg = lambda s, db: V_O + 32 * s + 4 * db
    G = Gaps()
    qs, qe, ps, pe = {}, {}, {}, {}
    def emit_pv(i):
        t, s = per[i]
        fresh = (t - off[s]) % 16 == 0
        for db in range(8):
            d = ('v', Oreg(s, db))
            k = G.add(mfma16(d, ('a', A_V + 32 * (t % 2) + 4 * db), ('v', Preg(i)), None if fresh else d))
            if db == 0: ps[i] = k
        d = ('v', V_L + 4 * s)
        pe[i] = G.add(mfma16(d, ('v', V_ONE), ('v', Preg(i)), None if fresh else d))
    for i, (t, s) in enumerate(per):
        for kb in range(2):
            for j in range(4):
                d = ('v', Sreg(i, kb))
                k = G.add(mfma16(d, ('a', A_K + 32 * (t % 2) + 16 * kb + 4 * j), ('a', qreg(s, rnd(t, s)) + 4 * j), None if j == 0 else d))
                if kb == 0 and j == 0: qs[i] = k
        qe[i] = k
        if i > 0: emit_pv(i - 1)
    emit_pv(NP - 1)
    NG = len(G.bb)
    ex = lambda r: valu(f'v_exp_f32 v{r}, v{r}', [r], [r], cost=2, kind='trans')
    cv = lambda d, a, b: valu(f'v_cvt_pk_bf16_f32 v{d}, v{a}, v{b}', [a, b], [d])
    for i in range(NP):
        a, b, p = Sreg(i, 0), Sreg(i, 1), Preg(i)
        if i > 0:
            for k in range(4): G.put(ps[i - 1] + 2 * k, ex(a + k))
            G.put(ps[i - 1] + 5, cv(p, a, a + 1)); G.put(ps[i - 1] + 8, cv(p + 1, a + 2, a + 3))
        if i < NP - 1:
            for k in range(4): G.put(qs[i + 1] + k, ex(b + k))
            G.put(qs[i + 1] + 4, cv(p + 2, b, b + 1)); G.put(qs[i + 1] + 5, cv(p + 3, b + 2, b + 3))
    a, p = Sreg(0, 0), Preg(0)
    G.place([ex(a + k) for k in range(4)] + [cv(p, a, a + 1), cv(p + 1, a + 2, a + 3)], qs[0] + 6, qs[1] + 6)
    b, p = Sreg(NP - 1, 1), Preg(NP - 1)
    G.place([ex(b + k) for k in range(4)] + [cv(p + 2, b, b + 1), cv(p + 3, b + 2, b + 3)], ps[NP - 2] + 3, pe[NP - 2])

    A = {t: (pe[first[t] - 1] if t > 0 else qe[0]) for t in range(T)}
    def win(t, margin=0):
        lo = A[t]
        hi = (A[t + 1] - 1) if t + 1 < T else NG - 1
        return lo, max(lo, hi - margin) if hi - lo > 2 * margin else hi
    def vslot(t): return LDS_K + 8192 * (t + 3) if t <= 12 else 8192 * (t % 4)
    def kread(u):
        tile = u % 16; st = tile // 8; o = []
        for kb in range(2):
            for j in range(4):
                d = A_K + 32 * (u % 2) + 16 * kb + 4 * j
                o.append(I(f'ds_read_b128 {R("a",d,4)}, v{V_KA+4*st+j} offset:{(tile%8)*8192+kb*4096}', 'ds_rd',
                           rd=[('v', V_KA + 4 * st + j)], wr=regs('a', d, 4), grp=('K', u)))
        return o
    vbase = [0]
    def vread(t):
        o = []
        sl = vslot(t); nb = sl // 65536 * 65536
        if nb != vbase[0]:
            dlt = (nb - vbase[0]) & 0xffffffff
            for m in range(4): o.append(valu(f'v_add_u32 v{V_VA+m}, 0x{dlt:x}, v{V_VA+m}', [V_VA + m], [V_VA + m]))
            vbase[0] = nb
        for db in range(8):
            for kb in range(2):
                d = A_V + 32 * (t % 2) + 4 * db + 2 * kb
                o.append(I(f'ds_read_b64_tr_b16 {R("a",d,2)}, v{V_VA+db//2} offset:{sl-nb+kb*4096+(db&1)*8}', 'ds_rd',
                           rd=[('v', V_VA + db // 2)], wr=regs('a', d, 2), grp=('Vr', t), tok=('Vr', t)))
        return o
    def vdma(t):
        o = [salu(f's_add_u32 m0, s{S_WV}, 0x{vslot(t):x}', wr=[('s', 'm0')])]
        for h in range(2):
            o.append(I(f'buffer_load_dwordx4 v{V_VG}, s[{S_V}:{S_V+3}], s{S_TILE+t%16} offen offset:{1024*h} lds', 'vm_dma',
                       rd=[('v', V_VG), ('s', 'm0')], tok=('V', t)))
        return o
    def kload(u):
        o = []
        for h in range(2):
            d = V_KR + 8 * (u % NKB) + 4 * h
            o.append(I(f'buffer_load_dwordx4 {R("v",d,4)}, v{V_KG+h}, s[{S_K}:{S_K+3}], s{S_TILE+u} offen', 'vm_ld',
                       rd=[('v', V_KG + h)], wr=regs('v', d, 4), grp=('Kraw', u)))
        return o
    kwbase = [0]
    def kscale(u):
        o = []
        nb = u // 8 * 65536
        if nb != kwbase[0]:
            o.append(valu(f'v_add_u32 v{V_KW}, 0x10000, v{V_KW}', [V_KW], [V_KW])); kwbase[0] = nb
        for h in range(2):
            d = V_KR + 8 * (u % NKB) + 4 * h
            for e in range(0, 4, 2):
                t0 = V_T + 4 * ((e // 2) % 2)
                for x in range(2):
                    o.append(valu(f'v_lshlrev_b32 v{t0+2*x}, 16, v{d+e+x}', [d + e + x], [t0 + 2 * x]))
                    o.append(valu(f'v_and_b32 v{t0+2*x+1}, 0xffff0000, v{d+e+x}', [d + e + x], [t0 + 2 * x + 1]))
                for x in range(4):
                    o.append(valu(f'v_mul_f32 v{t0+x}, v{V_C}, v{t0+x}', [V_C, t0 + x], [t0 + x]))
                for x in range(2):
                    o.append(cv(d + e + x, t0 + 2 * x, t0 + 2 * x + 1))
            o.append(I(f'ds_write_b128 v{V_KW}, {R("v",d,4)} offset:{(u%8)*8192+h*4096}', 'ds_wr',
                       rd=[('v', V_KW)] + regs('v', d, 4), cost=4, tok=('Kw', u)))
        return o
    def qload(s, r):
        n = 4 * r + s; o = []
        for j in range(4):
            d = qreg(s, r) + 4 * j
            o.append(I(f'buffer_load_dwordx4 {R("a",d,4)}, v{V_QO+n%2}, s[{S_Q}:{S_Q+3}], s{S_TILE+n//2} offen offset:{64*j}' + (' nt' if qnt else ''),
                       'vm_ld', rd=[('v', V_QO + n % 2)], wr=regs('a', d, 4), grp=('Q', s, r)))
        return o
    def epilogue(s, r):
        n = 4 * r + s; l = V_L + 4 * s; o = []
        o.append(valu(f'v_rcp_f32 v{l+1}, v{l}', [l], [l + 1], cost=2, kind='trans'))
        o.append(valu(f'v_subrev_u32 v{l+2}, 0x{L_LO:x}, v{l}', [l], [l + 2]))
        o.append(valu(f'v_max_u32 v{V_BAD}, v{V_BAD}, v{l+2}', [V_BAD, l + 2], [V_BAD]))
        for m in range(4):
            b = Oreg(s, 2 * m)
            for x in range(8): o.append(valu(f'v_mul_f32 v{b+x}, v{l+1}, v{b+x}', [l + 1, b + x], [b + x]))
            for x in range(4): o.append(cv(b + x, b + 2 * x, b + 2 * x + 1))
            o.append(I(f'buffer_store_dwordx4 {R("v",b,4)}, v{V_QO+n%2}, s[{S_O}:{S_O+3}], s{S_TILE+n//2} offen offset:{64*m}' + (' nt' if ont else ''),
                       'vm_st', rd=[('v', V_QO + n % 2)] + regs('v', b, 4), cost=3))
        return o
    nst = [0]
    def stamp():
        if not stamps: return []
        k = nst[0]; nst[0] += 1
        assert k < 64
        return [I('s_memtime s[60:61]', 'salu'), I('s_memrealtime s[62:63]', 'salu'), I('s_waitcnt lgkmcnt(0)', 'wait'),
                I(f'v_writelane_b32 v{V_ST0}, s60, {k}', 'salu'), I(f'v_writelane_b32 v{V_ST1}, s62, {k}', 'salu')]
    pub, wr, kwin = {}, {}, {}
    for u in range(1, T):
        t = u - 1
        hi = qs[first[u]] - 1
        if u < 16 and len(active[t]) >= 3:
            pub[u] = t; lo = A[t]
        else:
            if u < 16: pub[u] = t - 1
            lo = qs[first[t]]
        kwin[u] = (lo, hi - 6 if hi - lo > 20 else hi)
    pub[0] = -1
    for u in range(16): wr[u] = pub[u] - 1
    for u in range(16): assert wr[u] >= u - 3
    kiss = {}
    for u in range(16):
        w = wr[u] - DK
        if u - NKB >= 0: w = max(w, wr[u - NKB] + 1, 0)
        kiss[u] = w
    viss = {t: (t - 1 - DV if t <= 16 else t - 4) for t in range(T)}
    qiss = {}
    for s in range(4):
        for r in range(3):
            qiss[(s, r)] = off[s] + 16 * r - DQ - ((3 - s) if len(set(off)) == 1 else 0)
    pro = []
    pro += stamp()
    ev = []
    for u in range(16):
        if kiss[u] < 0: ev.append((wr[u] - 0.5 if u > 0 else -10, 0, kload(u)))
    for t in range(T):
        if viss[t] < 0: ev.append((t - 1.2 if t > 0 else -9, 1, vdma(t)))
    for (s, r), w in qiss.items():
        if w < 0: ev.append((off[s] + 16 * r - 2 + 0.3 * s, 2, qload(s, r)))
    ev.sort(key=lambda e: (e[0], e[1]))
    for e in ev: pro += e[2]
    pre_k = [u for u in range(16) if pub[u] < 0]
    for u in pre_k: pro += kscale(u)
    pro += stamp()
    pro.append(I('s_barrier', 'barrier', need=[('Kw', u) for u in pre_k] + [('V', 0)]))
    pro += kread(0)
    pro += vread(0)
    for u in range(16):
        if pub[u] >= 0 and wr[u] < 0: pro += kscale(u)
    for t in range(T - 1):
        need = [('V', t + 1), ('Vr', t)] + [('Kw', u) for u in range(16) if pub[u] == t]
        for x in stamp(): G.put(A[t], x)
        G.put(A[t], I('s_barrier', 'barrier', need=need))
    tail = []
    epi = []
    for i, (t, s) in enumerate(per):
        if (t - off[s]) % 16 == 15:
            nxt = [k for k in range(i + 1, NP) if per[k][1] == s]
            lo = pe[i] + 3
            hi = (ps[nxt[0]] - 2) if nxt else min(NG - 1, lo + 70)
            epi.append((s, rnd(t, s), lo, hi))
    for t in range(T - 1):
        lo, hi = win(t)
        pre = []
        for tt in range(T):
            if viss[tt] == t: pre += vdma(tt)
        for u in range(16):
            if kiss[u] == t: pre += kload(u)
        for (s, r), w in qiss.items():
            if w == t: pre += qload(s, r)
        if pre: G.place(pre, lo, min(hi, lo + 24), spread=False)
        G.place(kread(t + 1), *kwin[t + 1])
        G.place(vread(t + 1), *win(t, 8))
    for (s, r, lo, hi) in epi:
        if lo + 6 > NG - 1 or hi - lo < 8: tail += epilogue(s, r)
        else: G.place(epilogue(s, r), lo, hi)
    for t in range(T - 1):
        for u in range(16):
            if wr[u] == t: G.place(kscale(u), *win(t, 6))
    body = G.linear()
    if verbose: print('gaps', NG, 'est cycles', G.est_cycles(), file=sys.stderr)
    tail += stamp()
    seq = pro + body + tail
    seq = insert_waits(seq, verbose)
    seq = fix_hazards(seq, False)
    return seq, nst[0]

HEADER = f'''; Kernarg layout for this problem (48 bytes, ptrs only, base s[0:1]):
; @launch grid=(256,1,1) block=(256,1,1) lds=163840
'''

def setup(stamps):
    o = []
    a = o.append
    a('s_cmp_ge_u32 s2, 256'); a('s_cbranch_scc1 L_end')
    a('s_load_dwordx4 s[4:7], s[0:1], 0')
    a('s_load_dwordx4 s[28:31], s[0:1], 16')
    if stamps: a('s_load_dwordx2 s[64:65], s[0:1], 40')
    a(f'v_lshrrev_b32 v{V_X}, 6, v0')
    a('v_and_b32 v0, 63, v0')
    a(f'v_readfirstlane_b32 s{S_WAVE}, v{V_X}')
    a('s_and_b32 s26, s2, 7'); a('s_lshr_b32 s27, s2, 4'); a('s_lshl_b32 s27, s27, 3'); a('s_or_b32 s26, s26, s27')
    a('s_bfe_u32 s27, s2, 0x10003')
    a('s_lshl_b32 s48, s26, 1'); a('s_add_u32 s48, s48, s27'); a('s_lshl_b32 s48, s48, 2'); a(f's_add_u32 s48, s48, s{S_WAVE}')
    a('s_mul_i32 s48, s48, 49152')
    a('s_lshl_b32 s49, s26, 17')
    a(f's_lshl_b32 s{S_WV}, s{S_WAVE}, 11')
    for t in range(16): a(f's_mov_b32 s{S_TILE+t}, {8192*t}')
    x = V_X
    a(f'v_and_b32 v{x}, 15, v0')
    a(f'v_lshrrev_b32 v{x+1}, 4, v0')
    a(f'v_lshlrev_b32 v{V_QO}, 8, v{x}'); a(f'v_lshl_add_u32 v{V_QO}, v{x+1}, 4, v{V_QO}'); a(f'v_add_u32 v{V_QO+1}, 0x1000, v{V_QO}')
    a(f's_lshl_b32 s50, s{S_WAVE}, 10')
    a(f'v_lshl_add_u32 v{V_KG}, v0, 4, s50'); a(f'v_add_u32 v{V_KG+1}, 0x1000, v{V_KG}')
    a('s_waitcnt lgkmcnt(0)')
    for (sr, lo, offs, n) in ((S_K, 6, 49, 131072), (S_V, 28, 49, 131072), (S_Q, 4, 48, 49152), (S_O, 30, 48, 49152)):
        a(f's_add_u32 s{sr}, s{lo}, s{offs}'); a(f's_addc_u32 s{sr+1}, s{lo+1}, 0')
        a(f's_mov_b32 s{sr+2}, {n}'); a(f's_mov_b32 s{sr+3}, 0x20000')
    a(f'v_lshlrev_b32 v{x+2}, 2, v{x+1}'); a(f'v_xor_b32 v{x+2}, v{x+2}, v{x}'); a(f'v_lshlrev_b32 v{x+2}, 4, v{x+2}')
    a(f'v_lshl_add_u32 v{x+2}, v{x+1}, 8, v{x+2}'); a(f'v_add_u32 v{V_VG}, s{S_WV}, v{x+2}')
    return o

def setup2():
    o = []; a = o.append; x = V_X
    a(f's_lshl_b32 s50, s{S_WAVE}, 2')
    a(f'v_add_u32 v{x+2}, s50, v{x+1}'); a(f'v_xor_b32 v{x+3}, v{x+2}, v{x}'); a(f'v_lshlrev_b32 v{x+3}, 4, v{x+3}')
    a(f'v_lshl_add_u32 v{x+3}, v{x+2}, 8, v{x+3}'); a(f'v_add_u32 v{V_KW}, 0x{LDS_K:x}, v{x+3}')
    for j in range(4):
        a(f'v_add_u32 v{x+2}, {4*j}, v{x+1}'); a(f'v_xor_b32 v{x+2}, v{x+2}, v{x}'); a(f'v_lshlrev_b32 v{x+2}, 4, v{x+2}')
        a(f'v_lshl_add_u32 v{x+2}, v{x}, 8, v{x+2}'); a(f'v_add_u32 v{V_KA+j}, 0x{LDS_K:x}, v{x+2}')
        a(f'v_add_u32 v{V_KA+4+j}, 0x{LDS_K+65536:x}, v{x+2}')
    a(f'v_lshrrev_b32 v{x+2}, 2, v0'); a(f'v_and_b32 v{x+3}, 3, v{x+2}'); a(f'v_and_b32 v{x+4}, 3, v0')
    a(f'v_lshlrev_b32 v{x+4}, 4, v{x+4}'); a(f'v_lshl_add_u32 v{x+4}, v{x+2}, 8, v{x+4}')
    for m in range(4):
        a(f'v_xor_b32 v{x+2}, {m}, v{x+3}'); a(f'v_lshl_add_u32 v{V_VA+m}, v{x+2}, 6, v{x+4}')
    for k in range(4): a(f'v_mov_b32 v{V_ONE+k}, 0x3f803f80')
    a(f'v_mov_b32 v{V_C}, 0x{CSC:x}'); a(f'v_mov_b32 v{V_BAD}, 0')
    return o

def build(fn, stamps=False, **kw):
    seq, nst = gen(stamps=stamps, **kw)
    o = [HEADER.rstrip('\n'), '.amdgcn_target "amdgcn-amd-amdhsa--gfx950"', '.text', f'.globl {NAME}_kernel', '.p2align 8',
         f'.type {NAME}_kernel,@function', f'{NAME}_kernel:']
    o += setup(stamps)
    if stamps: o += [f'v_mov_b32 v{V_ST0}, 0', f'v_mov_b32 v{V_ST1}, 0']
    k = 0
    while seq[k].kind in ('vm_ld', 'vm_dma', 'salu', 'nop') or (stamps and k < 5): k += 1
    o += [x.txt for x in seq[:k]]
    o += setup2()
    o += [x.txt for x in seq[k:]]
    if stamps:
        o += ['s_lshl_b32 s50, s2, 2', f's_add_u32 s50, s50, s{S_WAVE}', 's_lshl_b32 s50, s50, 9',
              's_mov_b32 s66, 0x100000', 's_mov_b32 s67, 0x20000', f'v_lshlrev_b32 v{V_X}, 2, v0',
              f'buffer_store_dword v{V_ST0}, v{V_X}, s[64:67], s50 offen', f'buffer_store_dword v{V_ST1}, v{V_X}, s[64:67], s50 offen offset:256']
    o += ['L_end:', 's_endpgm', '.section .rodata,"a"', '.p2align 6', f'.amdhsa_kernel {NAME}_kernel',
          '  .amdhsa_next_free_vgpr 512', '  .amdhsa_next_free_sgpr 96', '  .amdhsa_accum_offset 256',
          '  .amdhsa_group_segment_fixed_size 0', '  .amdhsa_kernarg_size 48', '  .amdhsa_user_sgpr_count 2',
          '  .amdhsa_user_sgpr_kernarg_segment_ptr 1', '  .amdhsa_system_sgpr_workgroup_id_x 1', '.end_amdhsa_kernel']
    open(fn, 'w').write('\n'.join(o) + '\n')
    return nst

if __name__ == '__main__':
    ap = argparse.ArgumentParser()
    ap.add_argument('-o', default=f'cdna_kernels/{NAME}.s')
    ap.add_argument('--off', default='0,0,0,0')
    ap.add_argument('--stamps', action='store_true')
    ap.add_argument('--DV', type=int, default=4); ap.add_argument('--DK', type=int, default=4); ap.add_argument('--DQ', type=int, default=5)
    ap.add_argument('--noqnt', action='store_true'); ap.add_argument('--noont', action='store_true')
    a = ap.parse_args()
    n = build(a.o, stamps=a.stamps, off=tuple(int(x) for x in a.off.split(',')), DV=a.DV, DK=a.DK, DQ=a.DQ,
              qnt=not a.noqnt, ont=not a.noont, verbose=True)
    print('stamps', n)
```

```python
import re

def regs(t, lo, n=1):
    return [(t, lo + i) for i in range(n)]

def R(t, lo, n=1):
    return f'{t}{lo}' if n == 1 else f'{t}[{lo}:{lo+n-1}]'

class I:
    __slots__ = ('txt', 'kind', 'rd', 'wr', 'cost', 'grp', 'need', 'tok', 'srcc', 'note')
    def __init__(self, txt, kind, rd=(), wr=(), cost=1, grp=None, need=(), tok=None, srcc=()):
        self.txt = txt; self.kind = kind; self.rd = list(rd); self.wr = list(wr)
        self.cost = cost; self.grp = grp; self.need = list(need); self.tok = tok; self.srcc = list(srcc)
        self.note = ''
    def cls(self):
        if self.kind in ('salu', 'wait', 'barrier', 'nop', 'anchor'): return 0
        if self.kind in ('ds_rd', 'ds_wr', 'vm_ld', 'vm_dma', 'vm_st'): return 1
        return 2

def mfma16(d, a, b, c):
    ct = '0' if c is None else R(c[0], c[1], 4)
    rd = regs(a[0], a[1], 4) + regs(b[0], b[1], 4)
    sc = [] if c is None else regs(c[0], c[1], 4)
    return I(f'v_mfma_f32_16x16x32_bf16 {R(d[0],d[1],4)}, {R(a[0],a[1],4)}, {R(b[0],b[1],4)}, {ct}', 'mfma',
             rd=rd, wr=regs(d[0], d[1], 4), srcc=sc)

def valu(txt, rd, wr, cost=1, kind='valu'):
    return I(txt, kind, rd=[('v', x) for x in rd], wr=[('v', x) for x in wr], cost=cost)

def salu(txt, wr=(), rd=()):
    return I(txt, 'salu', rd=rd, wr=wr)

VM = ('vm_ld', 'vm_dma', 'vm_st')
DS = ('ds_rd', 'ds_wr')

def insert_waits(seq, verbose=False):
    out = []
    vmq = []
    dsq = []
    pend = {}
    tokpos = {}
    grp_members = {}
    for ins in seq:
        if ins.grp is not None:
            grp_members.setdefault(ins.grp, []).append(ins)
    issued = set()
    done = set()
    def covered(op): return id(op) in done
    nwaits = 0
    for ins in seq:
        needs = []
        for r in ins.rd + ins.wr + ins.srcc:
            op = pend.get(r)
            if op is not None and not covered(op) and op is not ins:
                needs.append(op)
        for t in ins.need:
            for op in tokpos.get(t, []):
                if not covered(op): needs.append(op)
        if needs:
            ext = []
            for op in needs:
                ext.append(op)
                if op.grp is not None:
                    for m in grp_members[op.grp]:
                        if id(m) in issued and not covered(m): ext.append(m)
            pos = len(out)
            k = len(out) - 1
            ids = set(id(o) for o in ext)
            hoist = None
            while k >= 0:
                o = out[k]
                if o.kind == 'mfma': hoist = k + 1; break
                if id(o) in ids or o.kind in ('label', 'branch', 'barrier'): break
                k -= 1
            if hoist is not None: pos = hoist
            after = set(id(o) for o in out[pos:])
            def cnt(q, kinds):
                tg = [i for i, o in enumerate(q) if id(o) in ids]
                if not tg: return None
                last = max(tg)
                n = sum(1 for o in q[last + 1:] if id(o) not in after)
                return last, n
            parts = []
            a = cnt(vmq, VM)
            if a is not None:
                last, n = a
                assert n <= 63, 'vmcnt overflow'
                parts.append(f'vmcnt({n})')
                for o in vmq[:last + 1]: done.add(id(o))
                del vmq[:last + 1]
            a = cnt(dsq, DS)
            if a is not None:
                last, n = a
                if n > 15:
                    last += n - 15; n = 15
                parts.append(f'lgkmcnt({n})')
                for o in dsq[:last + 1]: done.add(id(o))
                del dsq[:last + 1]
            if parts:
                w = I('s_waitcnt ' + ' '.join(parts), 'wait')
                out.insert(pos, w); nwaits += 1
        out.append(ins)
        issued.add(id(ins))
        if ins.kind in VM:
            vmq.append(ins)
            assert len(vmq) <= 63, f'too many outstanding vm ops at {ins.txt}'
        if ins.kind in DS: dsq.append(ins)
        if ins.kind in ('vm_ld', 'ds_rd'):
            for r in ins.wr: pend[r] = ins
        if ins.tok is not None: tokpos.setdefault(ins.tok, []).append(ins)
        if ins.kind == 'wait':
            m = re.search(r'vmcnt\((\d+)\)', ins.txt)
            if m:
                n = int(m.group(1))
                while len(vmq) > n: done.add(id(vmq.pop(0)))
            m = re.search(r'lgkmcnt\((\d+)\)', ins.txt)
            if m:
                n = int(m.group(1))
                while len(dsq) > n: done.add(id(dsq.pop(0)))
    if verbose: print('waits inserted', nwaits)
    return out

def states(ins):
    if ins.kind == 'nop':
        return int(ins.txt.split()[1]) + 1
    if ins.kind == 'label': return 0
    return 1

def fix_hazards(seq, verbose=False):
    out = []
    npad = 0
    for ins in seq:
        need = 0
        dist = 0
        isv = ins.kind in ('valu', 'trans', 'perm')
        ismem = ins.kind in VM + DS
        rd = set(ins.rd); wr = set(ins.wr); sc = set(ins.srcc)
        for p in reversed(out):
            if dist >= 10: break
            pw = set(p.wr)
            req = 0
            pv = p.kind in ('valu', 'trans', 'perm')
            if pv and ins.kind == 'mfma' and pw & (rd | sc): req = max(req, 2)
            if p.kind == 'mfma':
                if isv and pw & (rd | wr): req = max(req, 8)
                if ismem and pw & (rd | wr): req = max(req, 8)
                if ins.kind == 'mfma':
                    if pw & rd: req = max(req, 8)
                    if pw & sc and pw != sc: req = max(req, 6)
                if isv and set(p.srcc) & wr: req = max(req, 3)
            if p.kind == 'trans' and isv and ins.kind != 'trans' and pw & rd: req = max(req, 1)
            if p.kind == 'trans' and ismem and pw & rd: req = max(req, 1)
            if pv and ins.kind == 'perm' and pw & rd: req = max(req, 2)
            if p.kind == 'salu' and ('s', 'm0') in pw and ins.kind == 'vm_dma': req = max(req, 1)
            if p.kind in ('vm_st', 'ds_wr') and isv and set(p.rd) & wr: req = max(req, 2)
            if p.kind in ('vm_st', 'ds_wr') and ins.kind in ('vm_ld', 'ds_rd', 'mfma') and set(p.rd) & wr: req = max(req, 2)
            if req - dist > need: need = req - dist
            dist += states(p)
        if need > 0:
            out.append(I(f's_nop {need-1}', 'nop')); npad += 1
            if verbose: print('pad', need, 'before', ins.txt)
        out.append(ins)
    if verbose: print('hazard pads', npad)
    return out

class Gaps:
    CAP = 2
    def __init__(self):
        self.bb = []
        self.g = []
        self.extra = []
        self.block = set()
    def add(self, m):
        self.bb.append(m); self.g.append([[], [], []]); self.extra.append(0)
        return len(self.bb) - 1
    def load(self, k):
        s, m, v = self.g[k]
        c = max(0, len(s) - 1)
        c += sum(x.cost for x in m) + sum(x.cost for x in v)
        return c
    def put(self, k, ins):
        self.g[k][ins.cls()].append(ins)
    def inc(self, k, ins):
        if ins.cls() == 0: return 0 if not self.g[k][0] else 1
        return ins.cost
    def place(self, items, lo, hi, spread=True):
        assert lo <= hi, (lo, hi, items[0].txt)
        n = hi - lo + 1
        bonus = [0] * n
        total = sum(x.cost for x in items if x.cls() != 0)
        free = [max(0, self.CAP - self.load(lo + i)) for i in range(n)]
        F = sum(free)
        over = max(0, total - F)
        while True:
            bonus = [0] * n
            for j in range(over):
                bonus[(j * n // max(over, 1) + (n // (2 * over) if over <= n else 0)) % n if over <= n else j % n] += 1
            cap = [free[i] + bonus[i] for i in range(n)]
            capsum = sum(cap)
            used = [0] * n
            sal = [len(self.g[lo + i][0]) for i in range(n)]
            res = []
            cur = 0; prevcls = -1; ok = True
            cum = []
            s = 0
            for i in range(n):
                cum.append(s); s += cap[i]
            donecost = 0
            for x in items:
                c = x.cls()
                k = cur
                if c < prevcls: k = cur + 1
                if spread and total > 0 and capsum > total and c != 0:
                    target = donecost * capsum / total
                    while k < n - 1 and cum[k] + cap[k] <= target - 1e-9: k += 1
                while k < n:
                    need = x.cost if c != 0 else (0 if sal[k] == 0 else 1)
                    room = cap[k] - used[k]
                    if need <= room or (need > 2 and room >= 2 and used[k] == 0) : break
                    k += 1
                if k >= n: ok = False; break
                need = x.cost if c != 0 else (0 if sal[k] == 0 else 1)
                used[k] += need
                if c == 0: sal[k] += 1
                res.append(k);
                if k != cur: prevcls = -1
                cur = k; prevcls = max(prevcls, c)
                if c != 0: donecost += x.cost
            if ok: break
            if spread and over == 0 and capsum > total:
                spread = False
                continue
            over += 1
            assert over < 40 * n + 400, ('cannot place', items[0].txt, lo, hi)
        for x, k in zip(items, res): self.put(lo + k, x)
        return [lo + k for k in res]
    def linear(self):
        o = []
        for m, (s, mm, v) in zip(self.bb, self.g):
            o.append(m); o += s; o += mm; o += v
        return o
    def est_cycles(self):
        return sum(max(16, 8 + 4 * self.load(k)) for k in range(len(self.bb)))

class Job:
    __slots__ = ('ins', 'rel', 'dl', 'preds', 'succs', 'gap', 'idx', 'strided')
    def __init__(self, ins, rel, dl, strided=False):
        self.ins = ins; self.rel = rel; self.dl = dl; self.preds = []; self.succs = []; self.gap = None; self.strided = strided

class Sched:
    def __init__(self, G, stride_sp=17):
        self.G = G; self.jobs = []; self.sp = stride_sp
    def add(self, ins, rel, dl, strided=False):
        j = Job(ins, rel, dl, strided); j.idx = len(self.jobs); self.jobs.append(j); return j
    def dep(self, a, b, delta=None):
        if delta is None: delta = 1 if b.ins.cls() < a.ins.cls() else 0
        b.preds.append((a, delta)); a.succs.append((b, delta))
    def chain(self, items, rel, dl, after=None, strided_kinds=()):
        js = []
        for x in items:
            j = self.add(x, rel, dl, strided=x.kind in strided_kinds)
            if js: self.dep(js[-1], j)
            elif after is not None: self.dep(after, j)
            js.append(j)
        return js
    def run(self):
        G = self.G; NG = len(G.bb)
        ch = True
        while ch:
            ch = False
            for j in reversed(self.jobs):
                for s, d in j.succs:
                    dd = d
                    if s.dl - dd < j.dl: j.dl = s.dl - dd; ch = True
        ch = True
        while ch:
            ch = False
            for j in self.jobs:
                for p, d in j.preds:
                    if p.rel + d > j.rel: j.rel = p.rel + d; ch = True
        for j in self.jobs:
            assert j.rel <= j.dl, ('infeasible', j.ins.txt, j.rel, j.dl)
        import heapq
        todo = set(range(len(self.jobs)))
        byrel = sorted(self.jobs, key=lambda j: j.rel)
        ptr = 0; cand = []
        last_str = -1000
        for k in range(NG):
            while ptr < len(byrel) and byrel[ptr].rel <= k:
                cand.append(byrel[ptr]); ptr += 1
            nds = sum(1 for x in G.g[k][1] if x.kind in DS)
            while True:
                best = None
                room = G.CAP - G.load(k)
                for j in cand:
                    ok = True
                    for p, d in j.preds:
                        if p.gap is None or p.gap + d > k: ok = False; break
                    if not ok: continue
                    forced = j.dl <= k
                    if not forced:
                        if k in G.block: continue
                        c = G.inc(k, j.ins)
                        if c > room and not (c > G.CAP and room >= G.CAP): continue
                        if j.ins.kind in DS and nds >= 1: continue
                        if j.strided and k - last_str < self.sp: continue
                    key = (0 if forced else 1, min(j.ins.cls(), 2) // 2, j.dl, j.idx)
                    if best is None or key < best[0]: best = (key, j)
                if best is None: break
                j = best[1]
                G.put(k, j.ins); j.gap = k; cand.remove(j)
                if j.ins.kind in DS: nds += 1
                if j.strided: last_str = k
        left = [j for j in self.jobs if j.gap is None]
        assert not left, [j.ins.txt for j in left[:5]]
```

```python
import re, sys, math, struct, argparse
from asmlib import *

NAME = 'standalone__gqa_softmax__near_ridge'
def f2u(x): return struct.unpack('<I', struct.pack('<f', x))[0]
CSC = f2u(math.log2(math.e) / math.sqrt(128.0))

V_TID = 0
V_QO = 1
V_KG = 3
V_KW = 5
V_VG = 6
V_BAD = 7
V_KA = 8
V_VA = 16
V_ONE = 20
V_S = 24
V_P = 40
V_L = 48
V_O = 64
V_KR = 192
V_T = 240
V_C = 248
V_ST0 = 249; V_ST1 = 250
V_TCH = 232
SPARSE1 = True
V_X = 251
A_Q = 0
A_K = 128
A_V = 192
S_Q, S_K, S_V, S_O = 8, 12, 16, 20
S_WV = 24
S_WAVE = 25
S_TILE = 32
S_KT = 68
LDS_K = 32768
L_LO = 0x27800000
L_RANGE = 0x57800000 - L_LO

def gen(off=(0, 0, 0, 0), DV=4, DK=4, DQ=5, KLAT=3, pro_order='K0,V0,Q0,K1,Q1,|,Q2,Q3,V1,K2', rot=False, kpol=' nt', vpol=(' nt', ' nt', ' nt'), touch=-1, stamps=False, qnt=True, ont=True, verbose=False):
    NKB = DK + 1
    assert V_KR + 8 * NKB <= V_TCH
    T = 48 + max(off)
    active = [[s for s in range(4) if off[s] <= t < off[s] + 48] for t in range(T)]
    per = [(t, s) for t in range(T) for s in active[t]]
    NP = len(per)
    first = {}
    for i, (t, s) in enumerate(per): first.setdefault(t, i)
    rnd = lambda t, s: (t - off[s]) // 16
    qreg = lambda s, r: A_Q + 64 * (r % 2) + 16 * s
    Sreg = lambda i, kb: V_S + 8 * (i % 2) + 4 * kb
    Preg = lambda i: V_P + 4 * (i % 2)
    Oreg = lambda s, db: V_O + 32 * s + 4 * db
    G = Gaps()
    qs, qe, ps, pe = {}, {}, {}, {}
    def emit_pv(i):
        t, s = per[i]
        fresh = (t - off[s]) % 16 == 0
        for db in range(8):
            d = ('v', Oreg(s, db))
            k = G.add(mfma16(d, ('a', A_V + 32 * (t % 2) + 4 * db), ('v', Preg(i)), None if fresh else d))
            if db == 0: ps[i] = k
        d = ('v', V_L + 4 * s)
        pe[i] = G.add(mfma16(d, ('v', V_ONE), ('v', Preg(i)), None if fresh else d))
    for i, (t, s) in enumerate(per):
        for kb in range(2):
            for j in range(4):
                d = ('v', Sreg(i, kb))
                k = G.add(mfma16(d, ('a', A_K + 32 * (t % 2) + 16 * kb + 4 * j), ('a', qreg(s, rnd(t, s)) + 4 * j), None if j == 0 else d))
                if kb == 0 and j == 0: qs[i] = k
        qe[i] = k
        if i > 0: emit_pv(i - 1)
    emit_pv(NP - 1)
    NG = len(G.bb)
    ex = lambda r: valu(f'v_exp_f32 v{r}, v{r}', [r], [r], cost=2, kind='trans')
    cv = lambda d, a, b: valu(f'v_cvt_pk_bf16_f32 v{d}, v{a}, v{b}', [a, b], [d])
    for i in range(NP):
        a, b, p = Sreg(i, 0), Sreg(i, 1), Preg(i)
        if i > 0:
            for k in range(4): G.put(ps[i - 1] + 2 * k, ex(a + k))
            G.put(ps[i - 1] + 5, cv(p, a, a + 1)); G.put(ps[i - 1] + 8, cv(p + 1, a + 2, a + 3))
        if i < NP - 1:
            for k in range(4): G.put(qs[i + 1] + k, ex(b + k))
            G.put(qs[i + 1] + 4, cv(p + 2, b, b + 1)); G.put(qs[i + 1] + 5, cv(p + 3, b + 2, b + 3))
    a, p = Sreg(0, 0), Preg(0)
    G.place([ex(a + k) for k in range(4)] + [cv(p, a, a + 1), cv(p + 1, a + 2, a + 3)], qs[0] + 6, qs[1] + 6)
    b, p = Sreg(NP - 1, 1), Preg(NP - 1)
    G.place([ex(b + k) for k in range(4)] + [cv(p + 2, b, b + 1), cv(p + 3, b + 2, b + 3)], ps[NP - 2] + 3, pe[NP - 2])

    A = {t: (pe[first[t] - 1] if t > 0 else qe[0]) for t in range(T)}
    def win(t, margin=0):
        lo = A[t]
        hi = (A[t + 1] - 1) if t + 1 < T else NG - 1
        return lo, max(lo, hi - margin) if hi - lo > 2 * margin else hi
    def vslot(t): return LDS_K + 8192 * (t + 3) if t <= 12 else 8192 * (t % 4)
    def kread(u):
        tile = u % 16; st = tile // 8; o = []
        for kb in range(2):
            for j in range(4):
                d = A_K + 32 * (u % 2) + 16 * kb + 4 * j
                o.append(I(f'ds_read_b128 {R("a",d,4)}, v{V_KA+4*st+j} offset:{(tile%8)*8192+kb*4096}', 'ds_rd',
                           rd=[('v', V_KA + 4 * st + j)], wr=regs('a', d, 4), grp=('K', u)))
        return o
    vbase = [0]
    def vread(t):
        o = []
        sl = vslot(t); nb = sl // 65536 * 65536
        if nb != vbase[0]:
            dlt = (nb - vbase[0]) & 0xffffffff
            for m in range(4): o.append(valu(f'v_add_u32 v{V_VA+m}, 0x{dlt:x}, v{V_VA+m}', [V_VA + m], [V_VA + m]))
            vbase[0] = nb
        for db in range(8):
            for kb in range(2):
                d = A_V + 32 * (t % 2) + 4 * db + 2 * kb
                o.append(I(f'ds_read_b64_tr_b16 {R("a",d,2)}, v{V_VA+db//2} offset:{sl-nb+kb*4096+(db&1)*8}', 'ds_rd',
                           rd=[('v', V_VA + db // 2)], wr=regs('a', d, 2), grp=('Vr', t), tok=('Vr', t)))
        return o
    def vdma(t):
        o = [salu(f's_add_u32 m0, s{S_WV}, 0x{vslot(t):x}', wr=[('s', 'm0')])]
        for h in range(2):
            o.append(I(f'buffer_load_dwordx4 v{V_VG}, s[{S_V}:{S_V+3}], s{S_KT+t%16} offen offset:{1024*h}{vpol[min(t//16,2)]} lds', 'vm_dma',
                       rd=[('v', V_VG), ('s', 'm0')], tok=('V', t)))
        return o
    def kload(u):
        o = []
        for h in range(2):
            d = V_KR + 8 * (u % NKB) + 4 * h
            o.append(I(f'buffer_load_dwordx4 {R("v",d,4)}, v{V_KG+h}, s[{S_K}:{S_K+3}], s{S_KT+u} offen{kpol}', 'vm_ld',
                       rd=[('v', V_KG + h)], wr=regs('v', d, 4), grp=('Kraw', u)))
        return o
    kwbase = [0]
    def kscale(u):
        o = []
        nb = u // 8 * 65536
        if nb != kwbase[0]:
            o.append(valu(f'v_add_u32 v{V_KW}, 0x10000, v{V_KW}', [V_KW], [V_KW])); kwbase[0] = nb
        for h in range(2):
            d = V_KR + 8 * (u % NKB) + 4 * h
            for e in range(0, 4, 2):
                t0 = V_T + 4 * ((e // 2) % 2)
                for x in range(2):
                    o.append(valu(f'v_lshlrev_b32 v{t0+2*x}, 16, v{d+e+x}', [d + e + x], [t0 + 2 * x]))
                    o.append(valu(f'v_and_b32 v{t0+2*x+1}, 0xffff0000, v{d+e+x}', [d + e + x], [t0 + 2 * x + 1]))
                for x in range(4):
                    o.append(valu(f'v_mul_f32 v{t0+x}, v{V_C}, v{t0+x}', [V_C, t0 + x], [t0 + x]))
                for x in range(2):
                    o.append(cv(d + e + x, t0 + 2 * x, t0 + 2 * x + 1))
            o.append(I(f'ds_write_b128 v{V_KW}, {R("v",d,4)} offset:{(u%8)*8192+h*4096}', 'ds_wr',
                       rd=[('v', V_KW)] + regs('v', d, 4), cost=4, tok=('Kw', u)))
        return o
    def qload(s, r):
        n = 4 * r + s; o = []
        for j in range(4):
            d = qreg(s, r) + 4 * j
            o.append(I(f'buffer_load_dwordx4 {R("a",d,4)}, v{V_QO+n%2}, s[{S_Q}:{S_Q+3}], s{S_TILE+n//2} offen offset:{64*j}' + (' nt' if qnt else ''),
                       'vm_ld', rd=[('v', V_QO + n % 2)], wr=regs('a', d, 4), grp=('Q', s, r)))
        return o
    def epilogue(s, r):
        n = 4 * r + s; l = V_L + 4 * s; o = []
        o.append(valu(f'v_rcp_f32 v{l+1}, v{l}', [l], [l + 1], cost=2, kind='trans'))
        o.append(valu(f'v_subrev_u32 v{l+2}, 0x{L_LO:x}, v{l}', [l], [l + 2]))
        o.append(valu(f'v_max_u32 v{V_BAD}, v{V_BAD}, v{l+2}', [V_BAD, l + 2], [V_BAD]))
        for m in range(4):
            b = Oreg(s, 2 * m)
            for x in range(8): o.append(valu(f'v_mul_f32 v{b+x}, v{l+1}, v{b+x}', [l + 1, b + x], [b + x]))
            for x in range(4): o.append(cv(b + x, b + 2 * x, b + 2 * x + 1))
            o.append(I(f'buffer_store_dwordx4 {R("v",b,4)}, v{V_QO+n%2}, s[{S_O}:{S_O+3}], s{S_TILE+n//2} offen offset:{64*m}' + (' nt' if ont else ''),
                       'vm_st', rd=[('v', V_QO + n % 2)] + regs('v', b, 4), cost=3))
        return o
    nst = [0]
    def stamp():
        if not stamps: return []
        k = nst[0]; nst[0] += 1
        assert k < 64
        return [I('s_memtime s[60:61]', 'salu'), I('s_memrealtime s[62:63]', 'salu'), I('s_waitcnt lgkmcnt(0)', 'wait'),
                I(f'v_writelane_b32 v{V_ST0}, s60, {k}', 'salu'), I(f'v_writelane_b32 v{V_ST1}, s62, {k}', 'salu')]
    pub, wr, kwin = {}, {}, {}
    for u in range(1, T):
        t = u - 1
        hi = qs[first[u]] - 1
        if u < 16 and len(active[t]) >= 3:
            pub[u] = t; lo = A[t]
        else:
            if u < 16: pub[u] = t - 1
            lo = qs[first[t]]
        kwin[u] = (lo, hi - 6 if hi - lo > 20 else hi)
    pub[0] = -1
    for u in range(16): wr[u] = pub[u] - 1
    for u in range(16): assert wr[u] >= u - 3
    kiss = {}
    for u in range(16):
        w = wr[u] - DK
        if u - NKB >= 0: w = max(w, wr[u - NKB] + 1, 0)
        kiss[u] = w
    viss = {t: (t - 1 - DV if t <= 16 else t - 4) for t in range(T)}
    qiss = {}
    for s in range(4):
        for r in range(3):
            qiss[(s, r)] = off[s] + 16 * r - DQ - ((3 - s) if len(set(off)) == 1 else 0)
    pro1, pro = [], []
    pro1 += stamp()
    pre_k = [u for u in range(16) if pub[u] < 0]
    pre_k2 = [u for u in range(16) if pub[u] >= 0 and wr[u] < 0]
    order = []
    for tok in pro_order.split(','):
        order.append(tok)
    done_k, done_v, done_q = set(), set(), set()
    def issue(tok):
        c, n = tok[0], int(tok[1:])
        if c == 'K': done_k.add(n); return kload(n)
        if c == 'V': done_v.add(n); return vdma(n)
        done_q.add((n, 0)); return qload(n, 0)
    cut = order.index('|')
    for tok in order[:cut]: pro1 += issue(tok)
    pro += kscale(0)
    for tok in order[cut + 1:]: pro += issue(tok)
    for u in pre_k[1:]: pro += kscale(u)
    pro += stamp()
    pro.append(I('s_barrier', 'barrier', need=[('Kw', u) for u in pre_k] + [('V', 0)]))
    pro += kread(0)
    pro += vread(0)
    for u in pre_k2: pro += kscale(u)
    assert all(u in done_k for u in pre_k + pre_k2) and 0 in done_v and 1 in done_v
    assert max(done_k) < NKB
    for t in range(T - 1):
        need = [('V', t + 1), ('Vr', t)] + [('Kw', u) for u in range(16) if pub[u] == t]
        for x in stamp(): G.put(A[t], x)
        G.put(A[t], I('s_barrier', 'barrier', need=need))
    At = lambda t: 0 if t < 0 else (A[t] if t < T else NG - 1)
    S = Sched(G)
    for t in range(T - 1):
        lo, hi = A[t], A[t + 1] - 1
        S.chain(kread(t + 1), *kwin[t + 1])
        S.chain(vread(t + 1), lo, hi - 8 if hi - lo > 30 else hi - 2)
    prev = None
    nv = 0
    for t in range(T):
        if t in done_v: continue
        w = max(viss[t], nv // 2); nv += 1
        assert w <= t - 2
        prev = S.chain(vdma(t), At(w), min(At(w) + 14, At(w + 1) - 1), after=prev)[-1]
    prev = None; kw = {}; kl = {}
    nk = 0
    kw_iss = {}
    for u in range(16):
        if u in done_k: kw_iss[u] = -2
        else:
            kw_iss[u] = max(kiss[u], nk // 2); nk += 1
    for u in range(16):
        if u not in done_k:
            kl[u] = S.chain(kload(u), At(kw_iss[u]), At(kw_iss[u] + 1) + 20)
            if u - NKB in kw: S.dep(kw[u - NKB], kl[u][0], 1)
        if u in pre_k or u in pre_k2: continue
        dl = At(pub[u]) - (6 if At(pub[u]) - At(pub[u] - 1) > 20 else 2)
        rel = min(At(kw_iss[u] + KLAT), At(wr[u]))
        js = S.chain(kscale(u), rel, dl, after=prev)
        if u in kl: S.dep(kl[u][-1], js[0], 1)
        for j in js:
            if j.ins.kind == 'ds_wr': j.rel = max(j.rel, At(u - 3))
        prev = js[-1]; kw[u] = js[-1]
    for (s, r), w in sorted(qiss.items(), key=lambda e: e[1]):
        if (s, r) in done_q: continue
        need = off[s] + 16 * r
        S.chain(qload(s, r), At(max(w, 0)), max(At(need - 3), At(max(w, 0)) + 8), strided_kinds=('vm_ld',))
    if touch >= 0:
        for k in range(4):
            S.chain([I(f'buffer_load_dword v{V_TCH+1+k}, v{V_TCH}, s[{S_V}:{S_V+3}], s{S_KT+4*k} offen', 'vm_ld', rd=[('v', V_TCH)], wr=[('v', V_TCH + 1 + k)])],
                    At(4 * k + 2 + touch), At(4 * k + 3 + touch), strided_kinds=('vm_ld',))
    tail = []
    for i, (t, s) in enumerate(per):
        if (t - off[s]) % 16 == 15:
            nxt = [k for k in range(i + 1, NP) if per[k][1] == s]
            lo = pe[i] + 3
            hi = (ps[nxt[0]] - 2) if nxt else min(NG - 1, lo + 75)
            if hi - lo < 8: tail += epilogue(s, rnd(t, s)); continue
            js = S.chain(epilogue(s, rnd(t, s)), lo, hi, strided_kinds=('vm_st',))
            st = [j for j in js if j.ins.kind == 'vm_st']
            for m, j in enumerate(st):
                j.dl = lo + (hi - lo) * (m + 1) // 4
    S.run()
    body = G.linear()
    if verbose:
        print('gaps', NG, 'est cycles', G.est_cycles(), file=sys.stderr)
        ov = []
        for t in range(T):
            lo, hi = A[t], (A[t + 1] if t + 1 < T else NG)
            ov.append('%d/%d' % (sum(max(0, G.load(k) - 2) for k in range(lo, hi)), sum(max(0, 2 - G.load(k)) for k in range(lo, hi))))
        print('overflow/free slots per window:', ' '.join(ov), file=sys.stderr)
    tail += stamp()
    mark1 = I('', 'label'); mark2 = I('', 'label')
    seq = pro1 + [mark1] + pro + [mark2] + body + tail
    seq = insert_waits(seq, verbose)
    seq = fix_hazards(seq, False)
    k1 = seq.index(mark1); k2 = seq.index(mark2)
    return seq[:k1], seq[k1+1:k2], seq[k2+1:], nst[0]

HEADER = f'''; Kernarg layout for this problem (48 bytes, ptrs only, base s[0:1]):
; @launch grid=(256,1,1) block=(256,1,1) lds=163840
'''

def setup(stamps, pf=0, rot=False):
    o = []
    a = o.append
    a('s_cmp_ge_u32 s2, 256'); a('s_cbranch_scc1 L_end')
    a('s_load_dwordx4 s[4:7], s[0:1], 0')
    a('s_load_dwordx4 s[28:31], s[0:1], 16')
    if stamps: a('s_load_dwordx2 s[64:65], s[0:1], 40')
    if pf:
        a('s_getpc_b64 s[52:53]'); a('L_pc:')
        a(f's_lshr_b32 s54, s2, 3'); a(f's_and_b32 s54, s54, {pf-1}'); a('s_lshl_b32 s54, s54, 15')
        a(f'v_lshl_add_u32 v{V_T}, v0, 7, s54'); a(f'v_min_u32 v{V_T}, L_end-L_pc, v{V_T}')
        a(f'v_mov_b32 v{V_T+1}, s53'); a(f'v_add_co_u32 v{V_T}, vcc, s52, v{V_T}'); a('s_nop 1'); a(f'v_addc_co_u32 v{V_T+1}, vcc, 0, v{V_T+1}, vcc')
        a(f'global_load_dword v{V_T+2}, v[{V_T}:{V_T+1}], off')
    a(f'v_lshrrev_b32 v{V_X}, 6, v0')
    a('v_and_b32 v0, 63, v0')
    a(f'v_readfirstlane_b32 s{S_WAVE}, v{V_X}')
    a('s_and_b32 s26, s2, 7'); a('s_lshr_b32 s27, s2, 4'); a('s_lshl_b32 s27, s27, 3'); a('s_or_b32 s26, s26, s27')
    a('s_bfe_u32 s27, s2, 0x10003')
    a('s_lshl_b32 s48, s26, 1'); a('s_add_u32 s48, s48, s27'); a('s_lshl_b32 s48, s48, 2'); a(f's_add_u32 s48, s48, s{S_WAVE}')
    a('s_mul_i32 s48, s48, 49152')
    a('s_lshl_b32 s49, s26, 17')
    a(f's_lshl_b32 s{S_WV}, s{S_WAVE}, 11')
    for t in range(6): a(f's_mov_b32 s{S_TILE+t}, {8192*t}')
    if rot:
        a('s_lshl_b32 s51, s26, 13')
        for t in range(16):
            a(f's_add_u32 s{S_KT+t}, s51, {8192*t}'); a(f's_and_b32 s{S_KT+t}, s{S_KT+t}, 0x1e000')
    else:
        for t in range(16): a(f's_mov_b32 s{S_KT+t}, {8192*t}')
    x = V_X
    a(f'v_and_b32 v{x}, 15, v0')
    a(f'v_lshrrev_b32 v{x+1}, 4, v0')
    a(f'v_lshlrev_b32 v{V_QO}, 8, v{x}'); a(f'v_lshl_add_u32 v{V_QO}, v{x+1}, 4, v{V_QO}'); a(f'v_add_u32 v{V_QO+1}, 0x1000, v{V_QO}')
    a(f's_lshl_b32 s50, s{S_WAVE}, 10')
    a(f'v_lshl_add_u32 v{V_KG}, v0, 4, s50'); a(f'v_add_u32 v{V_KG+1}, 0x1000, v{V_KG}')
    a('s_waitcnt lgkmcnt(0)')
    for (sr, lo, offs, n) in ((S_K, 6, 49, 131072), (S_V, 28, 49, 131072), (S_Q, 4, 48, 49152), (S_O, 30, 48, 49152)):
        a(f's_add_u32 s{sr}, s{lo}, s{offs}'); a(f's_addc_u32 s{sr+1}, s{lo+1}, 0')
        a(f's_mov_b32 s{sr+2}, {n}'); a(f's_mov_b32 s{sr+3}, 0x20000')
    a(f'v_lshlrev_b32 v{x+2}, 2, v{x+1}'); a(f'v_xor_b32 v{x+2}, v{x+2}, v{x}'); a(f'v_lshlrev_b32 v{x+2}, 4, v{x+2}')
    a(f'v_lshl_add_u32 v{x+2}, v{x+1}, 8, v{x+2}'); a(f'v_add_u32 v{V_VG}, s{S_WV}, v{x+2}')
    return o

def setup2():
    o = []; a = o.append; x = V_X
    a(f's_lshl_b32 s50, s{S_WAVE}, 2')
    a(f'v_add_u32 v{x+2}, s50, v{x+1}'); a(f'v_xor_b32 v{x+3}, v{x+2}, v{x}'); a(f'v_lshlrev_b32 v{x+3}, 4, v{x+3}')
    a(f'v_lshl_add_u32 v{x+3}, v{x+2}, 8, v{x+3}'); a(f'v_add_u32 v{V_KW}, 0x{LDS_K:x}, v{x+3}')
    for j in range(4):
        a(f'v_add_u32 v{x+2}, {4*j}, v{x+1}'); a(f'v_xor_b32 v{x+2}, v{x+2}, v{x}'); a(f'v_lshlrev_b32 v{x+2}, 4, v{x+2}')
        a(f'v_lshl_add_u32 v{x+2}, v{x}, 8, v{x+2}'); a(f'v_add_u32 v{V_KA+j}, 0x{LDS_K:x}, v{x+2}')
        a(f'v_add_u32 v{V_KA+4+j}, 0x{LDS_K+65536:x}, v{x+2}')
    a(f'v_lshrrev_b32 v{x+2}, 2, v0'); a(f'v_and_b32 v{x+3}, 3, v{x+2}'); a(f'v_and_b32 v{x+4}, 3, v0')
    a(f'v_lshlrev_b32 v{x+4}, 4, v{x+4}'); a(f'v_lshl_add_u32 v{x+4}, v{x+2}, 8, v{x+4}')
    for m in range(4):
        a(f'v_xor_b32 v{x+2}, {m}, v{x+3}'); a(f'v_lshl_add_u32 v{V_VA+m}, v{x+2}, 6, v{x+4}')
    if SPARSE1:
        a(f'v_and_b32 v{x+2}, 3, v0'); a(f'v_cmp_eq_u32 vcc, 0, v{x+2}'); a(f'v_mov_b32 v{x+3}, 0x3f803f80'); a('s_nop 0')
        for k in range(4): a(f'v_cndmask_b32 v{V_ONE+k}, 0, v{x+3}, vcc')
    else:
        for k in range(4): a(f'v_mov_b32 v{V_ONE+k}, 0x3f803f80')
    a(f's_lshl_b32 s50, s{S_WAVE}, 13'); a(f'v_lshl_add_u32 v{V_TCH}, v0, 7, s50')
    a(f'v_mov_b32 v{V_C}, 0x{CSC:x}'); a(f'v_mov_b32 v{V_BAD}, 0')
    return o

def isize(t):
    op = t.split()[0]
    if op.startswith(('v_mfma', 'ds_', 'buffer_', 'global_', 'v_cvt_pk', 'v_writelane', 's_mem', 'v_lshl_add', 'v_max3', 'v_fma')): return 8
    m = re.search(r'0x([0-9a-f]+)', t)
    return 8 if m and int(m.group(1), 16) > 64 else 4

def build(fn, stamps=False, pf=0, chain=True, **kw):
    pro1, pro, body, nst = gen(stamps=stamps, **kw)
    o = [HEADER.rstrip('\n'), '.amdgcn_target "amdgcn-amd-amdhsa--gfx950"', '.text', f'.globl {NAME}_kernel', '.p2align 8',
         f'.type {NAME}_kernel,@function', f'{NAME}_kernel:']
    o += setup(stamps, pf, kw.get('rot', False))
    if stamps: o += [f'v_mov_b32 v{V_ST0}, 0', f'v_mov_b32 v{V_ST1}, 0']
    o += [x.txt for x in pro1]
    o += setup2()
    o += [x.txt for x in pro]
    if chain:
        bt = []; offs = 4; pg = 1; prev = None
        for x in body:
            if offs >= 4096 * pg and prev is not None and (prev.kind == 'mfma' or offs >= 4096 * pg + 40):
                bt.append(('PG', pg)); offs += 4; pg += 1
            bt.append(x.txt); offs += isize(x.txt); prev = x
        npg = pg
        o += ['s_mov_b64 vcc, -1']
        for w in range(3): o += [f's_cmp_eq_u32 s{S_WAVE}, {w}', f's_cbranch_scc1 L_pg{w+1}']
        o += ['s_branch L_pg4', '.p2align 12', 'L_body:', 's_mov_b64 vcc, 0']
        for x in bt:
            if isinstance(x, tuple):
                p = x[1]; o += [f'L_pg{p}:', f's_cbranch_vccnz ' + (f'L_pg{p+4}' if p + 4 < npg else 'L_body')]
            else: o.append(x)
    else:
        o += [x.txt for x in body]
    if stamps:
        o += ['s_lshl_b32 s50, s2, 2', f's_add_u32 s50, s50, s{S_WAVE}', 's_lshl_b32 s50, s50, 9',
              's_mov_b32 s66, 0x100000', 's_mov_b32 s67, 0x20000', f'v_lshlrev_b32 v{V_X}, 2, v0',
              f'buffer_store_dword v{V_ST0}, v{V_X}, s[64:67], s50 offen', f'buffer_store_dword v{V_ST1}, v{V_X}, s[64:67], s50 offen offset:256']
    o += ['L_end:', 's_endpgm', '.section .rodata,"a"', '.p2align 6', f'.amdhsa_kernel {NAME}_kernel',
          '  .amdhsa_next_free_vgpr 512', '  .amdhsa_next_free_sgpr 96', '  .amdhsa_accum_offset 256',
          '  .amdhsa_group_segment_fixed_size 0', '  .amdhsa_kernarg_size 48', '  .amdhsa_user_sgpr_count 2',
          '  .amdhsa_user_sgpr_kernarg_segment_ptr 1', '  .amdhsa_system_sgpr_workgroup_id_x 1', '.end_amdhsa_kernel']
    open(fn, 'w').write('\n'.join(o) + '\n')
    return nst

if __name__ == '__main__':
    ap = argparse.ArgumentParser()
    ap.add_argument('-o', default=f'cdna_kernels/{NAME}.s')
    ap.add_argument('--off', default='0,0,0,0')
    ap.add_argument('--stamps', action='store_true')
    ap.add_argument('--DV', type=int, default=4); ap.add_argument('--DK', type=int, default=4); ap.add_argument('--DQ', type=int, default=5)
    ap.add_argument('--pf', type=int, default=4); ap.add_argument('--nochain', action='store_true'); ap.add_argument('--rot', action='store_true'); ap.add_argument('--kpol', default='nt'); ap.add_argument('--vpol', default='nt,nt,nt'); ap.add_argument('--touch', type=int, default=-1); ap.add_argument('--dense1', action='store_true'); ap.add_argument('--KLAT', type=int, default=3); ap.add_argument('--pro', default='K0,V0,Q0,K1,Q1,|,Q2,Q3,V1,K2'); ap.add_argument('--noqnt', action='store_true'); ap.add_argument('--noont', action='store_true')
    a = ap.parse_args()
    SPARSE1 = not a.dense1
    n = build(a.o, stamps=a.stamps, pf=a.pf, chain=not a.nochain, rot=a.rot, touch=a.touch, kpol=(' '+a.kpol.replace('+',' ')).rstrip(), vpol=tuple((' '+x.replace('+',' ')).rstrip() for x in a.vpol.split(',')), KLAT=a.KLAT, pro_order=a.pro, off=tuple(int(x) for x in a.off.split(',')), DV=a.DV, DK=a.DK, DQ=a.DQ,
              qnt=not a.noqnt, ont=not a.noont, verbose=True)
    print('stamps', n)
```

```python
import re, sys, math, struct, argparse
from asmlib import *

NAME = 'standalone__gqa_softmax__near_ridge'
def f2u(x): return struct.unpack('<I', struct.pack('<f', x))[0]
CSC = f2u(math.log2(math.e) / math.sqrt(128.0))

V_QO = 1
V_KG = 3
V_KW = 5
V_VG = 6
V_BAD = 7
V_KA = 8
V_VA = 16
V_ONE = 20
V_S = 24
V_P = 40
V_L = 48
V_O = 64
V_KR = 192
V_QA = 232
V_QG = 236
V_T = 240
V_C = 248
V_ST0 = 249; V_ST1 = 250
V_LIN = 251
V_X = 252
A_Q = 0
A_K = 128
A_V = 192
S_Q, S_K, S_V, S_O = 8, 12, 16, 20
S_WV = 24
S_WAVE = 25
S_QB = 32
S_W4 = 44
S_KT = 68
LDS_K = 32768
LDS_ST = LDS_K + 65536
L_LO = 0x27800000
L_RANGE = 0x57800000 - L_LO

class P: pass

def gen(p):
    off = p.off; DV = p.DV; DK = p.DK
    NKB = DK + 1
    assert V_KR + 8 * NKB <= V_QA
    T = 48 + max(off)
    active = [[s for s in range(4) if off[s] <= t < off[s] + 48] for t in range(T)]
    per = [(t, s) for t in range(T) for s in active[t]]
    NP = len(per)
    first = {}
    for i, (t, s) in enumerate(per): first.setdefault(t, i)
    rnd = lambda t, s: (t - off[s]) // 16
    qreg = lambda s, r: A_Q + 64 * (r % 2) + 16 * s
    Sreg = lambda i, kb: V_S + 8 * (i % 2) + 4 * kb
    Preg = lambda i: V_P + 4 * (i % 2)
    bufs = [(V_O + 32 * b, V_L + 4 * b) for b in range(4)] + [(V_KR, V_KR + 32)]
    obuf = {}; nextuser = {}
    free = [(4, None)] if p.spare else []
    for i, (t, s) in enumerate(per):
        if (t - off[s]) % 16 == 0:
            r = rnd(t, s)
            if r == 0: obuf[(s, 0)] = s
            else:
                free.append((obuf[(s, r - 1)], (s, r - 1)))
                b, prevuser = free.pop(0)
                obuf[(s, r)] = b
                if prevuser is not None: nextuser[prevuser] = i
    Oreg = lambda s, r, db: bufs[obuf[(s, r)]][0] + 4 * db
    Lreg = lambda s, r: bufs[obuf[(s, r)]][1]
    G = Gaps()
    qs, qe, ps, pe = {}, {}, {}, {}
    def emit_pv(i):
        t, s = per[i]; r = rnd(t, s)
        fresh = (t - off[s]) % 16 == 0
        for db in range(8):
            d = ('v', Oreg(s, r, db))
            k = G.add(mfma16(d, ('a', A_V + 32 * (t % 2) + 4 * db), ('v', Preg(i)), None if fresh else d))
            if db == 0: ps[i] = k
        d = ('v', Lreg(s, r))
        pe[i] = G.add(mfma16(d, ('v', V_ONE), ('v', Preg(i)), None if fresh else d))
    for i, (t, s) in enumerate(per):
        for kb in range(2):
            for j in range(4):
                d = ('v', Sreg(i, kb))
                k = G.add(mfma16(d, ('a', A_K + 32 * (t % 2) + 16 * kb + 4 * j), ('a', qreg(s, rnd(t, s)) + 4 * j), None if j == 0 else d))
                if kb == 0 and j == 0: qs[i] = k
        qe[i] = k
        if i > 0: emit_pv(i - 1)
    emit_pv(NP - 1)
    NG = len(G.bb)
    ex = lambda r: valu(f'v_exp_f32 v{r}, v{r}', [r], [r], cost=2, kind='trans')
    cv = lambda d, a, b: valu(f'v_cvt_pk_bf16_f32 v{d}, v{a}, v{b}', [a, b], [d])
    for i in range(NP):
        a, b, pp = Sreg(i, 0), Sreg(i, 1), Preg(i)
        g0 = qs[i]
        if i > 0:
            for k in range(4): G.put(g0 + 7 + 2 * k, ex(a + k))
            G.put(g0 + 10, cv(pp, a, a + 1)); G.put(g0 + 14, cv(pp + 1, a + 2, a + 3))
            G.put(g0 + 15, ex(b))
        if i < NP - 1:
            g1 = qs[i + 1]
            for k in range(1, 4): G.put(g1 + 2 * k - 1, ex(b + k))
            if i > 0: G.put(g1 + 4, cv(pp + 2, b, b + 1))
            G.put(g1 + 6, cv(pp + 3, b + 2, b + 3))
    a, b, pp = Sreg(0, 0), Sreg(0, 1), Preg(0)
    G.place([ex(a + k) for k in range(4)] + [cv(pp, a, a + 1), cv(pp + 1, a + 2, a + 3), ex(b), cv(pp + 2, b, b + 1)], qs[0] + 7, qs[1] + 6)
    b, pp = Sreg(NP - 1, 1), Preg(NP - 1)
    G.place([ex(b + k) for k in range(1, 4)] + [cv(pp + 3, b + 2, b + 3)], ps[NP - 2] + 4, pe[NP - 2])
    G.put(pe[NP - 2], cv(pp + 2, b, b + 1))

    A = {t: (pe[first[t] - 1] if t > 0 else qe[0]) for t in range(T)}
    At = lambda t: 0 if t < 0 else (A[t] if t < T else NG - 1)
    def vslot(t): return LDS_K + 8192 * (t + 3) if t <= 12 else 8192 * (t % 4)
    def kread(u):
        tile = u % 16; st = tile // 8; o = []
        for kb in range(2):
            for j in range(4):
                d = A_K + 32 * (u % 2) + 16 * kb + 4 * j
                o.append(I(f'ds_read_b128 {R("a",d,4)}, v{V_KA+4*st+j} offset:{(tile%8)*8192+kb*4096}', 'ds_rd',
                           rd=[('v', V_KA + 4 * st + j)], wr=regs('a', d, 4), grp=('K', u)))
        return o
    vbase = [0]
    def vread(t):
        o = []
        sl = vslot(t); nb = sl // 65536 * 65536
        if nb != vbase[0]:
            dlt = (nb - vbase[0]) & 0xffffffff
            for m in range(4): o.append(valu(f'v_add_u32 v{V_VA+m}, 0x{dlt:x}, v{V_VA+m}', [V_VA + m], [V_VA + m]))
            vbase[0] = nb
        for db in range(8):
            for kb in range(2):
                d = A_V + 32 * (t % 2) + 4 * db + 2 * kb
                o.append(I(f'ds_read_b64_tr_b16 {R("a",d,2)}, v{V_VA+db//2} offset:{sl-nb+kb*4096+(db&1)*8}', 'ds_rd',
                           rd=[('v', V_VA + db // 2)], wr=regs('a', d, 2), grp=('Vr', t), tok=('Vr', t)))
        return o
    def vdma(t):
        o = [salu(f's_add_u32 m0, s{S_WV}, 0x{vslot(t):x}', wr=[('s', 'm0')])]
        for h in range(2):
            o.append(I(f'buffer_load_dwordx4 v{V_VG}, s[{S_V}:{S_V+3}], s{S_KT+t%16} offen offset:{1024*h}{p.vpol[min(t//16,2)]} lds', 'vm_dma',
                       rd=[('v', V_VG), ('s', 'm0')], tok=('V', t)))
        return o
    def qdma(s):
        o = [salu(f's_add_u32 m0, s{S_W4}, 0x{LDS_ST+16384*s:x}', wr=[('s', 'm0')])]
        for h in range(4):
            o.append(I(f'buffer_load_dwordx4 v{V_QG+h}, s[{S_Q}:{S_Q+3}], s{S_QB+s} offen offset:{1024*h}{p.qpol} lds', 'vm_dma',
                       rd=[('v', V_QG + h), ('s', 'm0')], tok=('Qd', s)))
        return o
    def qread(s):
        o = []
        for j in range(4):
            d = qreg(s, 0) + 4 * j
            o.append(I(f'ds_read_b128 {R("a",d,4)}, v{V_QA+j} offset:{16384*s}', 'ds_rd', rd=[('v', V_QA + j)], wr=regs('a', d, 4),
                       grp=('Qr', s), need=[('Qd', s)]))
        return o
    def kload(u):
        o = []
        for h in range(2):
            d = V_KR + 8 * (u % NKB) + 4 * h
            o.append(I(f'buffer_load_dwordx4 {R("v",d,4)}, v{V_KG+h}, s[{S_K}:{S_K+3}], s{S_KT+u} offen{p.kpol}', 'vm_ld',
                       rd=[('v', V_KG + h)], wr=regs('v', d, 4), grp=('Kraw', u)))
        return o
    kwbase = [0]
    def kscale(u):
        o = []
        nb = u // 8 * 65536
        if nb != kwbase[0]:
            o.append(valu(f'v_add_u32 v{V_KW}, 0x10000, v{V_KW}', [V_KW], [V_KW])); kwbase[0] = nb
        for h in range(2):
            d = V_KR + 8 * (u % NKB) + 4 * h
            for e in range(0, 4, 2):
                t0 = V_T + 4 * ((e // 2) % 2)
                for x in range(2):
                    o.append(valu(f'v_lshlrev_b32 v{t0+2*x}, 16, v{d+e+x}', [d + e + x], [t0 + 2 * x]))
                    o.append(valu(f'v_and_b32 v{t0+2*x+1}, 0xffff0000, v{d+e+x}', [d + e + x], [t0 + 2 * x + 1]))
                for x in range(4):
                    o.append(valu(f'v_mul_f32 v{t0+x}, v{V_C}, v{t0+x}', [V_C, t0 + x], [t0 + x]))
                for x in range(2):
                    o.append(cv(d + e + x, t0 + 2 * x, t0 + 2 * x + 1))
            o.append(I(f'ds_write_b128 v{V_KW}, {R("v",d,4)} offset:{(u%8)*8192+h*4096}', 'ds_wr',
                       rd=[('v', V_KW)] + regs('v', d, 4), cost=4, tok=('Kw', u)))
        return o
    def qload(s, r):
        n = 4 * r + s; o = []
        for j in range(4):
            d = qreg(s, r) + 4 * j
            o.append(I(f'buffer_load_dwordx4 {R("a",d,4)}, v{V_QO}, s[{S_Q}:{S_Q+3}], s{S_QB+n} offen offset:{64*j}{p.qpol}',
                       'vm_ld', rd=[('v', V_QO)], wr=regs('a', d, 4), grp=('Q', s, r)))
        return o
    def epilogue(s, r, lds=False, pk=False):
        n = 4 * r + s; l = Lreg(s, r); o = []
        o.append(valu(f'v_rcp_f32 v{l+2}, v{l}', [l], [l + 2], cost=2, kind='trans'))
        o.append(valu(f'v_subrev_u32 v{l+1}, 0x{L_LO:x}, v{l}', [l], [l + 1]))
        o.append(valu(f'v_max_u32 v{V_BAD}, v{V_BAD}, v{l+1}', [V_BAD, l + 1], [V_BAD]))
        for m in range(4):
            b = Oreg(s, r, 2 * m)
            if pk:
                for x in range(0, 8, 2):
                    o.append(valu(f'v_pk_mul_f32 {R("v",b+x,2)}, {R("v",b+x,2)}, {R("v",l+2,2)} op_sel_hi:[1,0]', [l + 2, b + x, b + x + 1], [b + x, b + x + 1]))
            else:
                for x in range(8): o.append(valu(f'v_mul_f32 v{b+x}, v{l+2}, v{b+x}', [l + 2, b + x], [b + x]))
            for x in range(4): o.append(cv(b + x, b + 2 * x, b + 2 * x + 1))
            if lds:
                o.append(I(f'ds_write_b128 v{V_QA+m}, {R("v",b,4)} offset:{16384*s}', 'ds_wr', rd=[('v', V_QA + m)] + regs('v', b, 4), cost=4))
            else:
                o.append(I(f'buffer_store_dwordx4 {R("v",b,4)}, v{V_QO}, s[{S_O}:{S_O+3}], s{S_QB+n} offen offset:{64*m}{p.opol}',
                           'vm_st', rd=[('v', V_QO)] + regs('v', b, 4), cost=3))
        if lds:
            for i in range(4):
                b = Oreg(s, r, 2 * i + 1)
                o.append(I(f'ds_read_b128 {R("v",b,4)}, v{V_LIN} offset:{16384*s+1024*i}', 'ds_rd', rd=[('v', V_LIN)], wr=regs('v', b, 4)))
            for i in range(4):
                b = Oreg(s, r, 2 * i + 1)
                o.append(I(f'buffer_store_dwordx4 {R("v",b,4)}, v{V_QG+i}, s[{S_O}:{S_O+3}], s{S_QB+n} offen offset:{1024*i}{p.opol}',
                           'vm_st', rd=[('v', V_QG + i)] + regs('v', b, 4), cost=3))
        return o
    nst = [1]
    def stamp():
        if not p.stamps: return []
        k = nst[0]; nst[0] += 1
        assert k < 64
        return [I('s_memtime s[60:61]', 'salu'), I('s_memrealtime s[62:63]', 'salu'), I('s_waitcnt lgkmcnt(0)', 'wait'),
                I(f'v_writelane_b32 v{V_ST0}, s60, {k}', 'salu'), I(f'v_writelane_b32 v{V_ST1}, s62, {k}', 'salu')]
    pub, wr, kwin = {}, {}, {}
    for u in range(1, T):
        t = u - 1
        hi = qs[first[u]] - 1
        if u < 16 and len(active[t]) >= 3:
            pub[u] = t; lo = A[t]
        else:
            if u < 16: pub[u] = t - 1
            lo = qs[first[t]]
        kwin[u] = (lo, hi - 6 if hi - lo > 20 else hi)
    pub[0] = -1
    for u in range(16): wr[u] = pub[u] - 1
    for u in range(16): assert wr[u] >= u - 3
    pro1, pro = [], []
    cur = pro1
    cur += stamp()
    dK, dV, dQ, dS, dR = set(), set(), set(), set(), set()
    for tok in p.pro.split(','):
        c = tok[0]
        if c == '|': cur = pro; continue
        if c == 'T': cur += stamp(); continue
        if c == 'B':
            assert all(u in dS for u in range(16) if pub[u] < 0) and 0 in dV
            cur.append(I('s_barrier', 'barrier', need=[('Kw', u) for u in dS] + [('V', 0)]))
            cur += kread(0); continue
        if c == 'W': cur += vread(0); continue
        n = int(tok[1:])
        if c == 'K':
            assert n < NKB or (n - NKB) in dS
            dK.add(n); cur += kload(n)
        elif c == 'V': dV.add(n); cur += vdma(n)
        elif c == 'Q': dQ.add(n); cur += qdma(n)
        elif c == 'S': assert n in dK; dS.add(n); cur += kscale(n)
        elif c == 'R': assert n in dQ; dR.add(n); cur += qread(n)
    assert 0 in dR and 1 in dV
    for t in range(T - 1):
        need = [('V', t + 1), ('Vr', t)] + [('Kw', u) for u in range(16) if pub[u] == t]
        if t < p.stfirst or t % p.stevery == 0:
            for x in stamp(): G.put(A[t], x)
        if t > 0: G.put(A[t] - 1, I('', 'anchor', need=need))
        G.put(A[t], I('s_barrier', 'barrier', need=need))
        if p.bargap: G.block.add(A[t])
    S = Sched(G)
    for t in range(T - 1):
        lo, hi = A[t], A[t + 1] - 1
        S.chain(kread(t + 1), *kwin[t + 1])
        S.chain(vread(t + 1), lo, hi - 8 if hi - lo > 30 else hi - 2)
    dm = []
    nv = 0
    for t in range(T):
        if t in dV: continue
        w = t - 1 - DV if t <= 16 else t - 4
        w = max(w, nv // 2 - 1); nv += 1
        if 5 <= t <= 12:
            s = (t - 5) // 2
            w = max(w, off[s] + (1 if s > 0 else 0))
        assert w <= t - 2, (t, w)
        dm.append((w, t - 1, 'V', t))
    for s in range(4):
        if s not in dQ: dm.append((max(-1, off[s] - p.DQ0), off[s] - 0.5, 'Q', s))
    dm.sort()
    prev = None; qd = {}
    for (w, _, c, n) in dm:
        js = S.chain(vdma(n) if c == 'V' else qdma(n), At(w), max(At(w) + 2, min(At(w) + 14, At(w + 1) - 1)), after=prev)
        if At(w + 1) - At(w) > 8: S.dep(js[0], js[1], 1)
        prev = js[-1]
        if c == 'Q': qd[n] = prev
    for s in range(4):
        if s in dR: continue
        i0 = per.index((off[s], s))
        js = S.chain(qread(s), max(0, qs[i0] - p.QRW), qs[i0] - 4)
        if s in qd: S.dep(qd[s], js[0], 1)
    prev = None; kw = {}; kl = {}; kiss = {}
    nk = 0
    for u in range(16):
        if u in dK: kiss[u] = -2
        else:
            kiss[u] = max(wr[u] - DK, nk // 2 - 1); nk += 1
    for u in range(16):
        if u not in dK:
            kl[u] = S.chain(kload(u), At(kiss[u]), At(kiss[u] + 1) + 20)
            if u - NKB in kw: S.dep(kw[u - NKB], kl[u][0], 1)
        if u in dS: continue
        dl = At(pub[u]) - (6 if At(pub[u]) - At(pub[u] - 1) > 20 else 2)
        rel = min(At(kiss[u] + p.KLAT), At(wr[u]))
        js = S.chain(kscale(u), rel, dl, after=prev)
        if u in kl: S.dep(kl[u][-1], js[0], 1)
        for j in js:
            if j.ins.kind == 'ds_wr':
                j.rel = max(j.rel, At(u - 3))
        prev = js[-1]; kw[u] = js[-1]
    for r in (1, 2):
        items = []
        for s in range(4): items += [(x, off[s] + 16 * r) for x in qload(s, r)]
        lo = At(16 * r - p.DQ); hi = At(off[3] + 16 * r - 4)
        prevj = None
        for k, (x, need) in enumerate(items):
            rel = lo + (hi - lo) * k // 16
            j = S.add(x, min(rel, At(need - 4)), At(need - 3), strided=True)
            if prevj: S.dep(prevj, j)
            prevj = j
    tail = []
    for i, (t, s) in enumerate(per):
        if (t - off[s]) % 16 == 15:
            r = rnd(t, s)
            lo = pe[i] + 3
            lds = p.taillds and r == 2
            if (s, r) in nextuser: hi = ps[nextuser[(s, r)]] - 2
            else: hi = min(NG - 1, lo + (p.EW if r < 2 else 75))
            if hi - lo < 12: tail += epilogue(s, r, lds, pk=p.pk); continue
            js = S.chain(epilogue(s, r, lds), lo, hi, strided_kinds=() if lds else ('vm_st',))
            if lds:
                rds = [j for j in js if j.ins.kind == 'ds_rd']; sts = [j for j in js if j.ins.kind == 'vm_st']
                S.dep(rds[-1], sts[0], min(6, (hi - lo) // 4))
            else:
                st = [j for j in js if j.ins.kind == 'vm_st']
                for m, j in enumerate(st): j.dl = hi - min(17, (hi - lo) // 4) * (3 - m)
    S.run()
    body = G.linear()
    if p.verbose:
        print('gaps', NG, 'est cycles', G.est_cycles(), file=sys.stderr)
        ov = []
        for t in range(T):
            lo, hi = A[t], (A[t + 1] if t + 1 < T else NG)
            ov.append('%d/%d' % (sum(max(0, G.load(k) - 2) for k in range(lo, hi)), sum(max(0, 2 - G.load(k)) for k in range(lo, hi))))
        print('overflow/free slots per window:', ' '.join(ov), file=sys.stderr)
    tail += stamp()
    if p.stamps: tail += [I('s_waitcnt vmcnt(0)', 'wait')] + stamp()
    mark1 = I('', 'label'); mark2 = I('', 'label')
    seq = pro1 + [mark1] + pro + [mark2] + body + tail
    seq = insert_waits(seq)
    seq = [x for x in seq if x.kind != 'anchor']
    if p.ko:
        nb = 0; out = []
        for x in seq:
            if x.kind == 'barrier': nb += 1
            if nb > 38:
                if 'bar' in p.ko and x.kind == 'barrier': continue
                if 'dma' in p.ko and x.kind == 'vm_dma': continue
                if 'vr' in p.ko and x.txt.startswith('ds_read_b64'): continue
                if 'kr' in p.ko and x.txt.startswith('ds_read_b128'): continue
                if 'wait' in p.ko and x.kind == 'wait' and 'lgkmcnt(0)' not in x.txt: continue
                if 'exp' in p.ko and x.kind == 'trans': continue
            out.append(x)
        seq = out
    seq = fix_hazards(seq)
    k1 = seq.index(mark1); k2 = seq.index(mark2)
    return seq[:k1], seq[k1 + 1:k2], seq[k2 + 1:], nst[0]

HEADER = f'''; Kernarg layout for this problem (48 bytes, ptrs only, base s[0:1]):
; @launch grid=(256,1,1) block=(256,1,1) lds=163840
'''

def setup(p):
    o = []; a = o.append; x = V_X
    if p.stamps: a('s_memtime s[84:85]'); a('s_memrealtime s[86:87]')
    a('s_cmp_ge_u32 s2, 256'); a('s_cbranch_scc1 L_end')
    a('s_load_dwordx4 s[4:7], s[0:1], 0')
    a('s_load_dwordx4 s[28:31], s[0:1], 16')
    if p.stamps: a('s_load_dwordx2 s[64:65], s[0:1], 40')
    if p.pf:
        a('s_getpc_b64 s[52:53]'); a('L_pc:')
        a('s_lshr_b32 s54, s2, 3'); a(f's_and_b32 s54, s54, {p.pf-1}'); a('s_lshl_b32 s54, s54, 15')
        a(f'v_lshl_add_u32 v{V_T}, v0, 7, s54'); a(f'v_min_u32 v{V_T}, L_fb-L_pc, v{V_T}')
        a(f'v_mov_b32 v{V_T+1}, s53'); a(f'v_add_co_u32 v{V_T}, vcc, s52, v{V_T}'); a('s_nop 1'); a(f'v_addc_co_u32 v{V_T+1}, vcc, 0, v{V_T+1}, vcc')
        a(f'global_load_dword v{V_T+2}, v[{V_T}:{V_T+1}], off')
    a(f'v_lshrrev_b32 v{x}, 6, v0')
    a('v_and_b32 v0, 63, v0')
    a(f'v_readfirstlane_b32 s{S_WAVE}, v{x}')
    a('s_and_b32 s26, s2, 7'); a('s_lshr_b32 s27, s2, 4'); a('s_lshl_b32 s27, s27, 3'); a('s_or_b32 s26, s26, s27')
    a('s_bfe_u32 s27, s2, 0x10003')
    a('s_lshl_b32 s48, s26, 1'); a('s_add_u32 s48, s48, s27'); a('s_lshl_b32 s48, s48, 2'); a(f's_add_u32 s48, s48, s{S_WAVE}')
    a('s_mul_i32 s48, s48, 49152')
    a('s_lshl_b32 s49, s26, 17')
    a(f's_lshl_b32 s{S_WV}, s{S_WAVE}, 11'); a(f's_lshl_b32 s{S_W4}, s{S_WAVE}, 12')
    for t in range(12): a(f's_mov_b32 s{S_QB+t}, {4096*t}')
    for t in range(16): a(f's_mov_b32 s{S_KT+t}, {8192*t}')
    a(f'v_and_b32 v{x}, 15, v0')
    a(f'v_lshrrev_b32 v{x+1}, 4, v0')
    a(f's_lshl_b32 s50, s{S_WAVE}, 10')
    a(f'v_lshl_add_u32 v{V_KG}, v0, 4, s50'); a(f'v_add_u32 v{V_KG+1}, 0x1000, v{V_KG}')
    a(f'v_lshlrev_b32 v{x+2}, 2, v{x+1}'); a(f'v_xor_b32 v{x+2}, v{x+2}, v{x}'); a(f'v_lshlrev_b32 v{x+2}, 4, v{x+2}')
    a(f'v_lshl_add_u32 v{x+2}, v{x+1}, 8, v{x+2}'); a(f'v_add_u32 v{V_VG}, s{S_WV}, v{x+2}')
    a(f'v_xor_b32 v{x+2}, v{x+1}, v{x}'); a(f'v_lshlrev_b32 v{x+3}, 8, v{x+1}')
    for i in range(4):
        a(f'v_xor_b32 v{V_QG+i}, {4*i}, v{x+2}'); a(f'v_lshl_add_u32 v{V_QG+i}, v{V_QG+i}, 4, v{x+3}')
    for sr, n in ((S_K, 131072), (S_V, 131072), (S_Q, 49152), (S_O, 49152)):
        a(f's_mov_b32 s{sr+2}, {n}'); a(f's_mov_b32 s{sr+3}, 0x20000')
    a('s_waitcnt lgkmcnt(0)')
    for (sr, lo, offs) in ((S_K, 6, 49), (S_V, 28, 49), (S_Q, 4, 48), (S_O, 30, 48)):
        a(f's_add_u32 s{sr}, s{lo}, s{offs}'); a(f's_addc_u32 s{sr+1}, s{lo+1}, 0')
    return o

def setup2(p):
    o = []; a = o.append; x = V_X
    a(f'v_lshlrev_b32 v{V_QO}, 8, v{x}'); a(f'v_lshl_add_u32 v{V_QO}, v{x+1}, 4, v{V_QO}'); a(f'v_add_u32 v{V_QO+1}, 0x1000, v{V_QO}')
    a(f's_lshl_b32 s50, s{S_WAVE}, 2')
    a(f'v_add_u32 v{x+2}, s50, v{x+1}'); a(f'v_xor_b32 v{x+3}, v{x+2}, v{x}'); a(f'v_lshlrev_b32 v{x+3}, 4, v{x+3}')
    a(f'v_lshl_add_u32 v{x+3}, v{x+2}, 8, v{x+3}'); a(f'v_add_u32 v{V_KW}, 0x{LDS_K:x}, v{x+3}')
    a(f'v_xor_b32 v{x+3}, v{x+1}, v{x}')
    for j in range(4):
        a(f'v_xor_b32 v{x+2}, {4*j}, v{x+3}'); a(f'v_lshlrev_b32 v{x+2}, 4, v{x+2}')
        a(f'v_lshl_add_u32 v{x+2}, v{x}, 8, v{x+2}'); a(f'v_add_u32 v{V_KA+j}, 0x{LDS_K:x}, v{x+2}')
        a(f'v_add_u32 v{V_KA+4+j}, 0x{LDS_K+65536:x}, v{x+2}')
        a(f'v_add_u32 v{V_QA+j}, s{S_W4}, v{V_KA+4+j}')
    a(f's_add_u32 s50, s{S_W4}, 0x{LDS_ST:x}'); a(f'v_lshl_add_u32 v{V_LIN}, v0, 4, s50')
    a(f'v_lshrrev_b32 v{x+2}, 2, v0'); a(f'v_and_b32 v{x+3}, 3, v{x+2}'); a(f'v_and_b32 v{x}, 3, v0')
    a(f'v_cmp_eq_u32 vcc, 0, v{x}')
    a(f'v_lshlrev_b32 v{x}, 4, v{x}'); a(f'v_lshl_add_u32 v{x}, v{x+2}, 8, v{x}')
    for m in range(4):
        a(f'v_xor_b32 v{x+2}, {m}, v{x+3}'); a(f'v_lshl_add_u32 v{V_VA+m}, v{x+2}, 6, v{x}')
    a(f'v_mov_b32 v{x+3}, 0x3f803f80')
    for k in range(4): a(f'v_cndmask_b32 v{V_ONE+k}, 0, v{x+3}, vcc')
    a(f'v_mov_b32 v{V_C}, 0x{CSC:x}'); a(f'v_mov_b32 v{V_BAD}, 0')
    return o

def fallback(p):
    o = []; a = o.append
    S0, S1, PP, M, O, L = V_S, V_S + 4, V_P, V_T, V_O, V_L
    def qk():
        for kb in range(2):
            for j in range(4):
                a(f'buffer_load_dwordx4 {R("a",A_K+16*kb+4*j,4)}, v{V_QO+kb}, s[{S_K}:{S_K+3}], s56 offen offset:{64*j}')
    def qkm():
        for kb in range(2):
            for j in range(4):
                d = R('v', S0 + 4 * kb, 4)
                a(f'v_mfma_f32_16x16x32_bf16 {d}, {R("a",A_K+16*kb+4*j,4)}, {R("a",4*j,4)}, ' + ('0' if j == 0 else d))
        a('s_nop 7'); a('s_nop 1')
    a('L_fb:')
    a('s_waitcnt vmcnt(0) lgkmcnt(0)')
    a('s_barrier')
    a(f's_lshl_b32 s57, s{S_WAVE}, 13')
    a(f'v_subrev_u32 v{V_VG}, s{S_WV}, v{V_VG}')
    for m in range(4): a(f'v_add_u32 v{V_VA+m}, s57, v{V_VA+m}')
    a(f'v_xor_b32 v{M+2}, 16, v0'); a(f'v_lshlrev_b32 v{M+2}, 2, v{M+2}')
    a(f'v_xor_b32 v{M+3}, 32, v0'); a(f'v_lshlrev_b32 v{M+3}, 2, v{M+3}')
    a('s_mov_b32 s55, 0')
    a('L_fb_q:')
    for j in range(4): a(f'buffer_load_dwordx4 {R("a",4*j,4)}, v{V_QO}, s[{S_Q}:{S_Q+3}], s55 offen offset:{64*j}')
    a(f'v_mov_b32 v{M}, 0xff800000')
    a('s_mov_b32 s56, 0')
    a('L_fb_max:')
    qk(); a('s_waitcnt vmcnt(0)'); qkm()
    for k in range(0, 8, 2): a(f'v_max3_f32 v{M}, v{S0+k}, v{S0+k+1}, v{M}')
    a('s_add_u32 s56, s56, 8192'); a('s_cmp_lt_u32 s56, 131072'); a('s_cbranch_scc1 L_fb_max')
    for k in (2, 3):
        a(f'ds_bpermute_b32 v{M+1}, v{M+k}, v{M}'); a('s_waitcnt lgkmcnt(0)'); a(f'v_max_f32 v{M}, v{M}, v{M+1}')
    a(f'v_mul_f32 v{M}, v{V_C}, v{M}')
    for k in range(32): a(f'v_mov_b32 v{O+k}, 0')
    for k in range(4): a(f'v_mov_b32 v{L+k}, 0')
    a('s_mov_b32 s56, 0')
    a('L_fb_pv:')
    qk()
    for h in range(2):
        a(f's_add_u32 m0, s57, {4096*h}'); a(f's_add_u32 s58, s56, {4096*h}')
        for i in range(4): a(f'buffer_load_dwordx4 v{V_VG}, s[{S_V}:{S_V+3}], s58 offen offset:{1024*i} lds')
    a('s_waitcnt vmcnt(0)')
    for db in range(8):
        for kb in range(2):
            a(f'ds_read_b64_tr_b16 {R("a",A_V+4*db+2*kb,2)}, v{V_VA+db//2} offset:{kb*4096+(db&1)*8}')
    qkm()
    for k in range(8): a(f'v_fma_f32 v{S0+k}, v{S0+k}, v{V_C}, -v{M}')
    for k in range(8): a(f'v_exp_f32 v{S0+k}, v{S0+k}')
    a('s_nop 0')
    for k in range(4): a(f'v_cvt_pk_bf16_f32 v{PP+k}, v{S0+2*k}, v{S0+2*k+1}')
    a('s_waitcnt lgkmcnt(0)'); a('s_nop 1')
    for db in range(8):
        d = R('v', O + 4 * db, 4); a(f'v_mfma_f32_16x16x32_bf16 {d}, {R("a",A_V+4*db,4)}, {R("v",PP,4)}, {d}')
    d = R('v', L, 4); a(f'v_mfma_f32_16x16x32_bf16 {d}, {R("v",V_ONE,4)}, {R("v",PP,4)}, {d}')
    a('s_nop 7')
    a('s_add_u32 s56, s56, 8192'); a('s_cmp_lt_u32 s56, 131072'); a('s_cbranch_scc1 L_fb_pv')
    a('s_nop 7')
    a(f'v_rcp_f32 v{L+1}, v{L}'); a('s_nop 0')
    for k in range(32): a(f'v_mul_f32 v{O+k}, v{L+1}, v{O+k}')
    for m in range(4):
        b = O + 8 * m
        for x in range(4): a(f'v_cvt_pk_bf16_f32 v{b+x}, v{b+2*x}, v{b+2*x+1}')
        a(f'buffer_store_dwordx4 {R("v",b,4)}, v{V_QO}, s[{S_O}:{S_O+3}], s55 offen offset:{64*m}')
    a('s_waitcnt vmcnt(0)')
    a('s_add_u32 s55, s55, 4096'); a('s_cmp_lt_u32 s55, 49152'); a('s_cbranch_scc1 L_fb_q')
    return o

def isize(t):
    op = t.split()[0]
    if op.startswith(('v_mfma', 'ds_', 'buffer_', 'global_', 'v_cvt_pk', 'v_writelane', 's_mem', 'v_lshl_add', 'v_max3', 'v_fma', 'v_pk')): return 8
    m = re.search(r'0x([0-9a-f]+)', t)
    return 8 if m and int(m.group(1), 16) > 64 else 4

def build(fn, p):
    pro1, pro, body, nst = gen(p)
    o = [HEADER.rstrip('\n'), '.amdgcn_target "amdgcn-amd-amdhsa--gfx950"', '.text', f'.globl {NAME}_kernel', '.p2align 8',
         f'.type {NAME}_kernel,@function', f'{NAME}_kernel:']
    o += setup(p)
    if p.stamps: o += [f'v_mov_b32 v{V_ST0}, s84', f'v_mov_b32 v{V_ST1}, s86']
    o += [x.txt for x in pro1]
    o += setup2(p)
    o += [x.txt for x in pro]
    bt = []; offs = 4; pg = 1; prev = None
    for x in body:
        if offs >= 4096 * pg and prev is not None and (prev.kind == 'mfma' or offs >= 4096 * pg + 40):
            bt.append(('PG', pg)); offs += 4; pg += 1
        bt.append(x.txt); offs += isize(x.txt); prev = x
    npg = pg
    o += ['s_mov_b64 vcc, -1']
    for w in range(3): o += [f's_cmp_eq_u32 s{S_WAVE}, {w}', f's_cbranch_scc1 L_pg{w+1}']
    o += ['s_branch L_pg4', '.p2align 12', 'L_body:', 's_mov_b64 vcc, 0']
    for x in bt:
        if isinstance(x, tuple):
            q = x[1]; o += [f'L_pg{q}:', f's_cbranch_vccnz ' + (f'L_pg{q+4}' if q + 4 < npg else 'L_body')]
        else: o.append(x)
    if p.stamps:
        o += ['s_lshl_b32 s50, s2, 2', f's_add_u32 s50, s50, s{S_WAVE}', 's_lshl_b32 s50, s50, 9',
              's_mov_b32 s66, 0x100000', 's_mov_b32 s67, 0x20000', f'v_lshlrev_b32 v{V_X}, 2, v0',
              f'buffer_store_dword v{V_ST0}, v{V_X}, s[64:67], s50 offen', f'buffer_store_dword v{V_ST1}, v{V_X}, s[64:67], s50 offen offset:256']
    rng = 0 if p.forcefb else L_RANGE
    o += [f'v_cmp_lt_u32 vcc, 0x{rng:x}, v{V_BAD}', 's_nop 4', 's_cbranch_vccz L_end']
    o += fallback(p)
    o += ['L_end:', 's_endpgm', '.section .rodata,"a"', '.p2align 6', f'.amdhsa_kernel {NAME}_kernel',
          '  .amdhsa_next_free_vgpr 512', '  .amdhsa_next_free_sgpr 96', '  .amdhsa_accum_offset 256',
          '  .amdhsa_group_segment_fixed_size 0', '  .amdhsa_kernarg_size 48', '  .amdhsa_user_sgpr_count 2',
          '  .amdhsa_user_sgpr_kernarg_segment_ptr 1', '  .amdhsa_system_sgpr_workgroup_id_x 1', '.end_amdhsa_kernel']
    open(fn, 'w').write('\n'.join(o) + '\n')
    return nst

def parse(argv):
    ap = argparse.ArgumentParser()
    ap.add_argument('-o', default=f'cdna_kernels/{NAME}.s')
    ap.add_argument('--off', default='0,1,2,3')
    ap.add_argument('--stamps', action='store_true'); ap.add_argument('--stevery', type=int, default=1); ap.add_argument('--stfirst', type=int, default=0)
    for k, v in dict(DV=4, DK=4, DQ=10, DQ0=3, KLAT=3, pf=4, EW=300, bargap=1, QRW=20).items(): ap.add_argument('--' + k, type=int, default=v)
    ap.add_argument('--pro', default='K0,V0,Q0,K1,|,S0,Q1,K2,V1,S1,T,B,R0,W,Q2,K3,S2')
    ap.add_argument('--kpol', default='nt'); ap.add_argument('--vpol', default=',,'); ap.add_argument('--qpol', default='nt'); ap.add_argument('--opol', default='nt')
    ap.add_argument('--nospare', action='store_true'); ap.add_argument('--taillds', action='store_true'); ap.add_argument('--pk', action='store_true')
    ap.add_argument('--ko', default=''); ap.add_argument('--forcefb', action='store_true'); ap.add_argument('-q', action='store_true')
    a = ap.parse_args(argv)
    pol = lambda x: (' ' + x.replace('+', ' ')).rstrip()
    a.off = tuple(int(x) for x in a.off.split(','))
    a.kpol = pol(a.kpol); a.qpol = pol(a.qpol); a.opol = pol(a.opol); a.vpol = tuple(pol(x) for x in a.vpol.split(','))
    a.spare = not a.nospare; a.verbose = not a.q
    return a

if __name__ == '__main__':
    a = parse(sys.argv[1:])
    n = build(a.o, a)
    if a.stamps: print('stamps', n)
```

```python
import re, sys, math, struct, argparse
from asmlib import *

NAME = 'standalone__gqa_softmax__near_ridge'
def f2u(x): return struct.unpack('<I', struct.pack('<f', x))[0]
CSC = f2u(math.log2(math.e) / math.sqrt(128.0))

V_QO = 1
V_KG = 3
V_KW = 5
V_VG = 6
V_BAD = 7
V_KA = 8
V_VA = 16
V_ONE = 20
V_S = 24
V_P = 40
V_L = 48
V_O = 64
V_KR = 192
V_QA = 232
V_QG = 236
V_T = 240
V_C = 248
V_ST0 = 249; V_ST1 = 250
V_LIN = 251
V_X = 252
A_Q = 0
A_K = 128
A_V = 192
S_Q, S_K, S_V, S_O = 8, 12, 16, 20
S_WV = 24
S_WAVE = 25
S_QB = 32
S_W4 = 44
S_KT = 68
LDS_K = 32768
LDS_ST = LDS_K + 65536
L_LO = 0x27800000
L_RANGE = 0x57800000 - L_LO

class P: pass

def gen(p):
    off = p.off; DV = p.DV; DK = p.DK
    NKB = DK + 1
    assert V_KR + 8 * NKB <= V_QA
    T = 48 + max(off)
    active = [[s for s in range(4) if off[s] <= t < off[s] + 48] for t in range(T)]
    per = [(t, s) for t in range(T) for s in active[t]]
    NP = len(per)
    first = {}
    for i, (t, s) in enumerate(per): first.setdefault(t, i)
    rnd = lambda t, s: (t - off[s]) // 16
    qreg = lambda s, r: A_Q + 64 * (r % 2) + 16 * s
    Sreg = lambda i, kb: V_S + 8 * (i % 2) + 4 * kb
    Preg = lambda i: V_P + 4 * (i % 2)
    bufs = [(V_O + 32 * b, V_L + 4 * b) for b in range(4)] + [(V_KR, V_KR + 32)]
    obuf = {}; nextuser = {}
    free = [(4, None)] if p.spare else []
    for i, (t, s) in enumerate(per):
        if (t - off[s]) % 16 == 0:
            r = rnd(t, s)
            if r == 0: obuf[(s, 0)] = s
            else:
                free.append((obuf[(s, r - 1)], (s, r - 1)))
                b, prevuser = free.pop(0)
                obuf[(s, r)] = b
                if prevuser is not None: nextuser[prevuser] = i
    Oreg = lambda s, r, db: bufs[obuf[(s, r)]][0] + 4 * db
    Lreg = lambda s, r: bufs[obuf[(s, r)]][1]
    G = Gaps()
    qs, qe, ps, pe = {}, {}, {}, {}
    def emit_pv(i):
        t, s = per[i]; r = rnd(t, s)
        fresh = (t - off[s]) % 16 == 0
        for db in range(8):
            d = ('v', Oreg(s, r, db))
            k = G.add(mfma16(d, ('a', A_V + 32 * (t % 2) + 4 * db), ('v', Preg(i)), None if fresh else d))
            if db == 0: ps[i] = k
        d = ('v', Lreg(s, r))
        pe[i] = G.add(mfma16(d, ('v', V_ONE), ('v', Preg(i)), None if fresh else d))
    for i, (t, s) in enumerate(per):
        for kb in range(2):
            for j in range(4):
                d = ('v', Sreg(i, kb))
                k = G.add(mfma16(d, ('a', A_K + 32 * (t % 2) + 16 * kb + 4 * j), ('a', qreg(s, rnd(t, s)) + 4 * j), None if j == 0 else d))
                if kb == 0 and j == 0: qs[i] = k
        qe[i] = k
        if i > 0: emit_pv(i - 1)
    emit_pv(NP - 1)
    NG = len(G.bb)
    ex = lambda r: valu(f'v_exp_f32 v{r}, v{r}', [r], [r], cost=2, kind='trans')
    cv = lambda d, a, b: valu(f'v_cvt_pk_bf16_f32 v{d}, v{a}, v{b}', [a, b], [d])
    for i in range(NP):
        a, b, pp = Sreg(i, 0), Sreg(i, 1), Preg(i)
        g0 = qs[i]
        if i > 0:
            for k in range(4): G.put(g0 + 7 + 2 * k, ex(a + k))
            G.put(g0 + 10, cv(pp, a, a + 1)); G.put(g0 + 14, cv(pp + 1, a + 2, a + 3))
            G.put(g0 + 15, ex(b))
        if i < NP - 1:
            g1 = qs[i + 1]
            for k in range(1, 4): G.put(g1 + 2 * k - 1, ex(b + k))
            if i > 0: G.put(g1 + 4, cv(pp + 2, b, b + 1))
            G.put(g1 + 6, cv(pp + 3, b + 2, b + 3))
    a, b, pp = Sreg(0, 0), Sreg(0, 1), Preg(0)
    G.place([ex(a + k) for k in range(4)] + [cv(pp, a, a + 1), cv(pp + 1, a + 2, a + 3), ex(b), cv(pp + 2, b, b + 1)], qs[0] + 7, qs[1] + 6)
    b, pp = Sreg(NP - 1, 1), Preg(NP - 1)
    G.place([ex(b + k) for k in range(1, 4)] + [cv(pp + 3, b + 2, b + 3)], ps[NP - 2] + 4, pe[NP - 2])
    G.put(pe[NP - 2], cv(pp + 2, b, b + 1))

    A = {t: (pe[first[t] - 1] if t > 0 else qe[0]) for t in range(T)}
    At = lambda t: 0 if t < 0 else (A[t] if t < T else NG - 1)
    def vslot(t): return LDS_K + 8192 * (t + 3) if t <= 12 else 8192 * (t % 4)
    def kread(u):
        tile = u % 16; st = tile // 8; o = []
        for kb in range(2):
            for j in range(4):
                d = A_K + 32 * (u % 2) + 16 * kb + 4 * j
                o.append(I(f'ds_read_b128 {R("a",d,4)}, v{V_KA+4*st+j} offset:{(tile%8)*8192+kb*4096}', 'ds_rd',
                           rd=[('v', V_KA + 4 * st + j)], wr=regs('a', d, 4), grp=('K', u)))
        return o
    vbase = [0]
    def vread(t):
        o = []
        sl = vslot(t); nb = sl // 65536 * 65536
        if nb != vbase[0]:
            dlt = (nb - vbase[0]) & 0xffffffff
            for m in range(4): o.append(valu(f'v_add_u32 v{V_VA+m}, 0x{dlt:x}, v{V_VA+m}', [V_VA + m], [V_VA + m]))
            vbase[0] = nb
        for db in range(8):
            for kb in range(2):
                d = A_V + 32 * (t % 2) + 4 * db + 2 * kb
                o.append(I(f'ds_read_b64_tr_b16 {R("a",d,2)}, v{V_VA+db//2} offset:{sl-nb+kb*4096+(db&1)*8}', 'ds_rd',
                           rd=[('v', V_VA + db // 2)], wr=regs('a', d, 2), grp=('Vr', t), tok=('Vr', t)))
        return o
    def vdma(t):
        o = [salu(f's_add_u32 m0, s{S_WV}, 0x{vslot(t):x}', wr=[('s', 'm0')])]
        for h in range(2):
            o.append(I(f'buffer_load_dwordx4 v{V_VG}, s[{S_V}:{S_V+3}], s{S_KT+t%16} offen offset:{1024*h}{p.vpol[min(t//16,2)]} lds', 'vm_dma',
                       rd=[('v', V_VG), ('s', 'm0')], tok=('V', t)))
        return o
    def qdma(s):
        o = [salu(f's_add_u32 m0, s{S_W4}, 0x{LDS_ST+16384*s:x}', wr=[('s', 'm0')])]
        for h in range(4):
            o.append(I(f'buffer_load_dwordx4 v{V_QG+h}, s[{S_Q}:{S_Q+3}], s{S_QB+s} offen offset:{1024*h}{p.qpol} lds', 'vm_dma',
                       rd=[('v', V_QG + h), ('s', 'm0')], tok=('Qd', s)))
        return o
    def qread(s):
        o = []
        for j in range(4):
            d = qreg(s, 0) + 4 * j
            o.append(I(f'ds_read_b128 {R("a",d,4)}, v{V_QA+j} offset:{16384*s}', 'ds_rd', rd=[('v', V_QA + j)], wr=regs('a', d, 4),
                       grp=('Qr', s), need=[('Qd', s)]))
        return o
    def kload(u):
        o = []
        for h in range(2):
            d = V_KR + 8 * (u % NKB) + 4 * h
            o.append(I(f'buffer_load_dwordx4 {R("v",d,4)}, v{V_KG+h}, s[{S_K}:{S_K+3}], s{S_KT+u} offen{p.kpol}', 'vm_ld',
                       rd=[('v', V_KG + h)], wr=regs('v', d, 4), grp=('Kraw', u)))
        return o
    kwbase = [0]
    def kscale(u):
        o = []
        nb = u // 8 * 65536
        if nb != kwbase[0]:
            o.append(valu(f'v_add_u32 v{V_KW}, 0x10000, v{V_KW}', [V_KW], [V_KW])); kwbase[0] = nb
        for h in range(2):
            d = V_KR + 8 * (u % NKB) + 4 * h
            for e in range(0, 4, 2):
                t0 = V_T + 4 * ((e // 2) % 2)
                for x in range(2):
                    o.append(valu(f'v_lshlrev_b32 v{t0+2*x}, 16, v{d+e+x}', [d + e + x], [t0 + 2 * x]))
                    o.append(valu(f'v_and_b32 v{t0+2*x+1}, 0xffff0000, v{d+e+x}', [d + e + x], [t0 + 2 * x + 1]))
                for x in range(4):
                    o.append(valu(f'v_mul_f32 v{t0+x}, v{V_C}, v{t0+x}', [V_C, t0 + x], [t0 + x]))
                for x in range(2):
                    o.append(cv(d + e + x, t0 + 2 * x, t0 + 2 * x + 1))
            o.append(I(f'ds_write_b128 v{V_KW}, {R("v",d,4)} offset:{(u%8)*8192+h*4096}', 'ds_wr',
                       rd=[('v', V_KW)] + regs('v', d, 4), cost=4, tok=('Kw', u)))
        return o
    def qload(s, r):
        n = 4 * r + s; o = []
        for j in range(4):
            d = qreg(s, r) + 4 * j
            o.append(I(f'buffer_load_dwordx4 {R("a",d,4)}, v{V_QO}, s[{S_Q}:{S_Q+3}], s{S_QB+n} offen offset:{64*j}{p.qpol}',
                       'vm_ld', rd=[('v', V_QO)], wr=regs('a', d, 4), grp=('Q', s, r)))
        return o
    def epilogue(s, r, lds=False, pk=False):
        n = 4 * r + s; l = Lreg(s, r); o = []
        o.append(valu(f'v_rcp_f32 v{l+2}, v{l}', [l], [l + 2], cost=2, kind='trans'))
        o.append(valu(f'v_subrev_u32 v{l+1}, 0x{L_LO:x}, v{l}', [l], [l + 1]))
        o.append(valu(f'v_max_u32 v{V_BAD}, v{V_BAD}, v{l+1}', [V_BAD, l + 1], [V_BAD]))
        for m in range(4):
            b = Oreg(s, r, 2 * m)
            if pk:
                for x in range(0, 8, 2):
                    o.append(valu(f'v_pk_mul_f32 {R("v",b+x,2)}, {R("v",b+x,2)}, {R("v",l+2,2)} op_sel_hi:[1,0]', [l + 2, b + x, b + x + 1], [b + x, b + x + 1]))
            else:
                for x in range(8): o.append(valu(f'v_mul_f32 v{b+x}, v{l+2}, v{b+x}', [l + 2, b + x], [b + x]))
            for x in range(4): o.append(cv(b + x, b + 2 * x, b + 2 * x + 1))
            if lds:
                o.append(I(f'ds_write_b128 v{V_QA+m}, {R("v",b,4)} offset:{16384*s}', 'ds_wr', rd=[('v', V_QA + m)] + regs('v', b, 4), cost=4))
            else:
                o.append(I(f'buffer_store_dwordx4 {R("v",b,4)}, v{V_QO}, s[{S_O}:{S_O+3}], s{S_QB+n} offen offset:{64*m}{p.opol}',
                           'vm_st', rd=[('v', V_QO)] + regs('v', b, 4), cost=3))
        if lds:
            for i in range(4):
                b = Oreg(s, r, 2 * i + 1)
                o.append(I(f'ds_read_b128 {R("v",b,4)}, v{V_LIN} offset:{16384*s+1024*i}', 'ds_rd', rd=[('v', V_LIN)], wr=regs('v', b, 4)))
            for i in range(4):
                b = Oreg(s, r, 2 * i + 1)
                o.append(I(f'buffer_store_dwordx4 {R("v",b,4)}, v{V_QG+i}, s[{S_O}:{S_O+3}], s{S_QB+n} offen offset:{1024*i}{p.opol}',
                           'vm_st', rd=[('v', V_QG + i)] + regs('v', b, 4), cost=3))
        return o
    nst = [1]
    def stamp():
        if not p.stamps: return []
        k = nst[0]; nst[0] += 1
        assert k < 64
        return [I('s_memtime s[60:61]', 'salu'), I('s_memrealtime s[62:63]', 'salu'), I('s_waitcnt lgkmcnt(0)', 'wait'),
                I(f'v_writelane_b32 v{V_ST0}, s60, {k}', 'salu'), I(f'v_writelane_b32 v{V_ST1}, s62, {k}', 'salu')]
    pub, wr, kwin = {}, {}, {}
    for u in range(1, T):
        t = u - 1
        hi = qs[first[u]] - 1
        if u < 16 and len(active[t]) >= 3:
            pub[u] = t; lo = A[t]
        else:
            if u < 16: pub[u] = t - 1
            lo = qs[first[t]]
        kwin[u] = (lo, hi - 6 if hi - lo > 20 else hi)
    pub[0] = -1
    for u in range(16): wr[u] = pub[u] - 1
    for u in range(16): assert wr[u] >= u - 3
    pro1, pro = [], []
    cur = pro1
    cur += stamp()
    dK, dV, dQ, dS, dR = set(), set(), set(), set(), set()
    for tok in p.pro.split(','):
        c = tok[0]
        if c == '|': cur = pro; continue
        if c == 'T': cur += stamp(); continue
        if c == 'B':
            assert all(u in dS for u in range(16) if pub[u] < 0) and 0 in dV
            cur.append(I('s_barrier', 'barrier', need=[('Kw', u) for u in dS] + [('V', 0)]))
            cur += kread(0); continue
        if c == 'W': cur += vread(0); continue
        n = int(tok[1:])
        if c == 'K':
            assert n < NKB or (n - NKB) in dS
            dK.add(n); cur += kload(n)
        elif c == 'V': dV.add(n); cur += vdma(n)
        elif c == 'Q': dQ.add(n); cur += qdma(n)
        elif c == 'S': assert n in dK; dS.add(n); cur += kscale(n)
        elif c == 'R': assert n in dQ; dR.add(n); cur += qread(n)
    assert 0 in dR and 1 in dV
    for t in range(T - 1):
        need = [('V', t + 1), ('Vr', t)] + [('Kw', u) for u in range(16) if pub[u] == t]
        if t < p.stfirst or t % p.stevery == 0:
            for x in stamp(): G.put(A[t], x)
        if t > 0: G.put(A[t] - 1, I('', 'anchor', need=need))
        G.put(A[t], I('s_barrier', 'barrier', need=need))
        if p.bargap: G.block.add(A[t])
    S = Sched(G)
    for t in range(T - 1):
        lo, hi = A[t], A[t + 1] - 1
        S.chain(kread(t + 1), *kwin[t + 1])
        S.chain(vread(t + 1), lo, hi - 8 if hi - lo > 30 else hi - 2)
    dm = []
    nv = 0
    for t in range(T):
        if t in dV: continue
        w = t - 1 - DV if t <= 16 else t - 4
        w = max(w, nv // 2 - 1); nv += 1
        if 5 <= t <= 12:
            s = (t - 5) // 2
            w = max(w, off[s] + (1 if s > 0 else 0))
        assert w <= t - 2, (t, w)
        dm.append((w, t - 1, 'V', t))
    for s in range(4):
        if s not in dQ: dm.append((max(-1, off[s] - p.DQ0), off[s] - 0.5, 'Q', s))
    dm.sort()
    prev = None; qd = {}
    for (w, _, c, n) in dm:
        js = S.chain(vdma(n) if c == 'V' else qdma(n), At(w), max(At(w) + 2, min(At(w) + 14, At(w + 1) - 1)), after=prev)
        if At(w + 1) - At(w) > 8: S.dep(js[0], js[1], 1)
        prev = js[-1]
        if c == 'Q': qd[n] = prev
    for s in range(4):
        if s in dR: continue
        i0 = per.index((off[s], s))
        js = S.chain(qread(s), max(0, qs[i0] - p.QRW), qs[i0] - 4)
        if s in qd: S.dep(qd[s], js[0], 1)
    prev = None; kw = {}; kl = {}; kiss = {}
    nk = 0
    for u in range(16):
        if u in dK: kiss[u] = -2
        else:
            kiss[u] = max(wr[u] - DK, nk // 2 - 1); nk += 1
    for u in range(16):
        if u not in dK:
            kl[u] = S.chain(kload(u), At(kiss[u]), At(kiss[u] + 1) + 20)
            if u - NKB in kw: S.dep(kw[u - NKB], kl[u][0], 1)
        if u in dS: continue
        dl = At(pub[u]) - (6 if At(pub[u]) - At(pub[u] - 1) > 20 else 2)
        rel = min(At(kiss[u] + p.KLAT), At(wr[u]))
        js = S.chain(kscale(u), rel, dl, after=prev)
        if u in kl: S.dep(kl[u][-1], js[0], 1)
        for j in js:
            if j.ins.kind == 'ds_wr':
                j.rel = max(j.rel, At(u - 3))
        prev = js[-1]; kw[u] = js[-1]
    for r in (1, 2):
        items = []
        for s in range(4): items += [(x, off[s] + 16 * r) for x in qload(s, r)]
        lo = At(16 * r - p.DQ); hi = At(off[3] + 16 * r - 4)
        prevj = None
        for k, (x, need) in enumerate(items):
            rel = lo + (hi - lo) * k // 16
            j = S.add(x, min(rel, At(need - 4)), At(need - 3), strided=True)
            if prevj: S.dep(prevj, j)
            prevj = j
    tail = []
    for i, (t, s) in enumerate(per):
        if (t - off[s]) % 16 == 15:
            r = rnd(t, s)
            lo = pe[i] + 3
            lds = p.taillds and r == 2
            if (s, r) in nextuser: hi = ps[nextuser[(s, r)]] - 2
            else: hi = min(NG - 1, lo + (p.EW if r < 2 else 75))
            if hi - lo < 12: tail += epilogue(s, r, lds, pk=p.pk); continue
            js = S.chain(epilogue(s, r, lds), lo, hi, strided_kinds=() if lds else ('vm_st',))
            if lds:
                rds = [j for j in js if j.ins.kind == 'ds_rd']; sts = [j for j in js if j.ins.kind == 'vm_st']
                S.dep(rds[-1], sts[0], min(6, (hi - lo) // 4))
            else:
                st = [j for j in js if j.ins.kind == 'vm_st']
                for m, j in enumerate(st): j.dl = hi - min(17, (hi - lo) // 4) * (3 - m)
    S.run()
    body = G.linear()
    if p.verbose:
        print('gaps', NG, 'est cycles', G.est_cycles(), file=sys.stderr)
        ov = []
        for t in range(T):
            lo, hi = A[t], (A[t + 1] if t + 1 < T else NG)
            ov.append('%d/%d' % (sum(max(0, G.load(k) - 2) for k in range(lo, hi)), sum(max(0, 2 - G.load(k)) for k in range(lo, hi))))
        print('overflow/free slots per window:', ' '.join(ov), file=sys.stderr)
    tail += stamp()
    if p.stamps: tail += [I('s_waitcnt vmcnt(0)', 'wait')] + stamp()
    mark1 = I('', 'label'); mark2 = I('', 'label')
    seq = pro1 + [mark1] + pro + [mark2] + body + tail
    seq = insert_waits(seq)
    seq = [x for x in seq if x.kind != 'anchor']
    if p.ko:
        nb = 0; out = []
        for x in seq:
            if x.kind == 'barrier': nb += 1
            if nb > 38:
                if 'bar' in p.ko and x.kind == 'barrier': continue
                if 'dma' in p.ko and x.kind == 'vm_dma': continue
                if 'vr' in p.ko and x.txt.startswith('ds_read_b64'): continue
                if 'kr' in p.ko and x.txt.startswith('ds_read_b128'): continue
                if 'wait' in p.ko and x.kind == 'wait' and 'lgkmcnt(0)' not in x.txt: continue
                if 'exp' in p.ko and x.kind == 'trans': continue
            out.append(x)
        seq = out
    seq = fix_hazards(seq)
    k1 = seq.index(mark1); k2 = seq.index(mark2)
    return seq[:k1], seq[k1 + 1:k2], seq[k2 + 1:], nst[0]

HEADER = f'''; Kernarg layout for this problem (48 bytes, ptrs only, base s[0:1]):
; @launch grid=(256,1,1) block=(256,1,1) lds=163840
'''

def setup(p):
    o = []; a = o.append; x = V_X
    if p.stamps: a('s_memtime s[84:85]'); a('s_memrealtime s[86:87]')
    a('s_cmp_ge_u32 s2, 256'); a('s_cbranch_scc1 L_end')
    a('s_load_dwordx4 s[4:7], s[0:1], 0')
    a('s_load_dwordx4 s[28:31], s[0:1], 16')
    if p.stamps: a('s_load_dwordx2 s[64:65], s[0:1], 40')
    if p.pf:
        a('s_getpc_b64 s[52:53]'); a('L_pc:')
        a('s_lshr_b32 s54, s2, 3'); a(f's_and_b32 s54, s54, {p.pf-1}'); a('s_lshl_b32 s54, s54, 15')
        a(f'v_lshl_add_u32 v{V_T}, v0, 7, s54'); a(f'v_min_u32 v{V_T}, L_fb-L_pc, v{V_T}')
        a(f'v_mov_b32 v{V_T+1}, s53'); a(f'v_add_co_u32 v{V_T}, vcc, s52, v{V_T}'); a('s_nop 1'); a(f'v_addc_co_u32 v{V_T+1}, vcc, 0, v{V_T+1}, vcc')
        a(f'global_load_dword v{V_T+2}, v[{V_T}:{V_T+1}], off')
    a(f'v_lshrrev_b32 v{x}, 6, v0')
    a('v_and_b32 v0, 63, v0')
    a(f'v_readfirstlane_b32 s{S_WAVE}, v{x}')
    a('s_and_b32 s26, s2, 7'); a('s_lshr_b32 s27, s2, 4'); a('s_lshl_b32 s27, s27, 3'); a('s_or_b32 s26, s26, s27')
    a('s_bfe_u32 s27, s2, 0x10003')
    a('s_lshl_b32 s48, s26, 1'); a('s_add_u32 s48, s48, s27'); a('s_lshl_b32 s48, s48, 2'); a(f's_add_u32 s48, s48, s{S_WAVE}')
    a('s_mul_i32 s48, s48, 49152')
    a('s_lshl_b32 s49, s26, 17')
    a(f's_lshl_b32 s{S_WV}, s{S_WAVE}, 11'); a(f's_lshl_b32 s{S_W4}, s{S_WAVE}, 12')
    for t in range(12): a(f's_mov_b32 s{S_QB+t}, {4096*t}')
    for t in range(16): a(f's_mov_b32 s{S_KT+t}, {8192*t}')
    a(f'v_and_b32 v{x}, 15, v0')
    a(f'v_lshrrev_b32 v{x+1}, 4, v0')
    a(f's_lshl_b32 s50, s{S_WAVE}, 10')
    a(f'v_lshl_add_u32 v{V_KG}, v0, 4, s50'); a(f'v_add_u32 v{V_KG+1}, 0x1000, v{V_KG}')
    a(f'v_lshlrev_b32 v{x+2}, 2, v{x+1}'); a(f'v_xor_b32 v{x+2}, v{x+2}, v{x}'); a(f'v_lshlrev_b32 v{x+2}, 4, v{x+2}')
    a(f'v_lshl_add_u32 v{x+2}, v{x+1}, 8, v{x+2}'); a(f'v_add_u32 v{V_VG}, s{S_WV}, v{x+2}')
    a(f'v_xor_b32 v{x+2}, v{x+1}, v{x}'); a(f'v_lshlrev_b32 v{x+3}, 8, v{x+1}')
    for i in range(4):
        a(f'v_xor_b32 v{V_QG+i}, {4*i}, v{x+2}'); a(f'v_lshl_add_u32 v{V_QG+i}, v{V_QG+i}, 4, v{x+3}')
    for sr, n in ((S_K, 131072), (S_V, 131072), (S_Q, 49152), (S_O, 49152)):
        a(f's_mov_b32 s{sr+2}, {n}'); a(f's_mov_b32 s{sr+3}, 0x20000')
    a('s_waitcnt lgkmcnt(0)')
    for (sr, lo, offs) in ((S_K, 6, 49), (S_V, 28, 49), (S_Q, 4, 48), (S_O, 30, 48)):
        a(f's_add_u32 s{sr}, s{lo}, s{offs}'); a(f's_addc_u32 s{sr+1}, s{lo+1}, 0')
    return o

def setup2(p):
    o = []; a = o.append; x = V_X
    a(f'v_lshlrev_b32 v{V_QO}, 8, v{x}'); a(f'v_lshl_add_u32 v{V_QO}, v{x+1}, 4, v{V_QO}'); a(f'v_add_u32 v{V_QO+1}, 0x1000, v{V_QO}')
    a(f's_lshl_b32 s50, s{S_WAVE}, 2')
    a(f'v_add_u32 v{x+2}, s50, v{x+1}'); a(f'v_xor_b32 v{x+3}, v{x+2}, v{x}'); a(f'v_lshlrev_b32 v{x+3}, 4, v{x+3}')
    a(f'v_lshl_add_u32 v{x+3}, v{x+2}, 8, v{x+3}'); a(f'v_add_u32 v{V_KW}, 0x{LDS_K:x}, v{x+3}')
    a(f'v_xor_b32 v{x+3}, v{x+1}, v{x}')
    for j in range(4):
        a(f'v_xor_b32 v{x+2}, {4*j}, v{x+3}'); a(f'v_lshlrev_b32 v{x+2}, 4, v{x+2}')
        a(f'v_lshl_add_u32 v{x+2}, v{x}, 8, v{x+2}'); a(f'v_add_u32 v{V_KA+j}, 0x{LDS_K:x}, v{x+2}')
        a(f'v_add_u32 v{V_KA+4+j}, 0x{LDS_K+65536:x}, v{x+2}')
        a(f'v_add_u32 v{V_QA+j}, s{S_W4}, v{V_KA+4+j}')
    a(f's_add_u32 s50, s{S_W4}, 0x{LDS_ST:x}'); a(f'v_lshl_add_u32 v{V_LIN}, v0, 4, s50')
    a(f'v_lshrrev_b32 v{x+2}, 2, v0'); a(f'v_and_b32 v{x+3}, 3, v{x+2}'); a(f'v_and_b32 v{x}, 3, v0')
    a(f'v_cmp_eq_u32 vcc, 0, v{x}')
    a(f'v_lshlrev_b32 v{x}, 4, v{x}'); a(f'v_lshl_add_u32 v{x}, v{x+2}, 8, v{x}')
    for m in range(4):
        a(f'v_xor_b32 v{x+2}, {m}, v{x+3}'); a(f'v_lshl_add_u32 v{V_VA+m}, v{x+2}, 6, v{x}')
    a(f'v_mov_b32 v{x+3}, 0x3f803f80')
    for k in range(4): a(f'v_cndmask_b32 v{V_ONE+k}, 0, v{x+3}, vcc')
    a(f'v_mov_b32 v{V_C}, 0x{CSC:x}'); a(f'v_mov_b32 v{V_BAD}, 0')
    return o

def fallback(p):
    o = []; a = o.append
    S0, S1, PP, M, O, L = V_S, V_S + 4, V_P, V_T, V_O, V_L
    def qk():
        for kb in range(2):
            for j in range(4):
                a(f'buffer_load_dwordx4 {R("a",A_K+16*kb+4*j,4)}, v{V_QO+kb}, s[{S_K}:{S_K+3}], s56 offen offset:{64*j}')
    def qkm():
        for kb in range(2):
            for j in range(4):
                d = R('v', S0 + 4 * kb, 4)
                a(f'v_mfma_f32_16x16x32_bf16 {d}, {R("a",A_K+16*kb+4*j,4)}, {R("a",4*j,4)}, ' + ('0' if j == 0 else d))
        a('s_nop 7'); a('s_nop 1')
    a('L_fb:')
    a('s_waitcnt vmcnt(0) lgkmcnt(0)')
    a('s_barrier')
    a(f's_lshl_b32 s57, s{S_WAVE}, 13')
    a(f'v_subrev_u32 v{V_VG}, s{S_WV}, v{V_VG}')
    for m in range(4): a(f'v_add_u32 v{V_VA+m}, s57, v{V_VA+m}')
    a(f'v_xor_b32 v{M+2}, 16, v0'); a(f'v_lshlrev_b32 v{M+2}, 2, v{M+2}')
    a(f'v_xor_b32 v{M+3}, 32, v0'); a(f'v_lshlrev_b32 v{M+3}, 2, v{M+3}')
    a('s_mov_b32 s55, 0')
    a('L_fb_q:')
    for j in range(4): a(f'buffer_load_dwordx4 {R("a",4*j,4)}, v{V_QO}, s[{S_Q}:{S_Q+3}], s55 offen offset:{64*j}')
    a(f'v_mov_b32 v{M}, 0xff800000')
    a('s_mov_b32 s56, 0')
    a('L_fb_max:')
    qk(); a('s_waitcnt vmcnt(0)'); qkm()
    for k in range(0, 8, 2): a(f'v_max3_f32 v{M}, v{S0+k}, v{S0+k+1}, v{M}')
    a('s_add_u32 s56, s56, 8192'); a('s_cmp_lt_u32 s56, 131072'); a('s_cbranch_scc1 L_fb_max')
    for k in (2, 3):
        a(f'ds_bpermute_b32 v{M+1}, v{M+k}, v{M}'); a('s_waitcnt lgkmcnt(0)'); a(f'v_max_f32 v{M}, v{M}, v{M+1}')
    a(f'v_mul_f32 v{M}, v{V_C}, v{M}')
    for k in range(32): a(f'v_mov_b32 v{O+k}, 0')
    for k in range(4): a(f'v_mov_b32 v{L+k}, 0')
    a('s_mov_b32 s56, 0')
    a('L_fb_pv:')
    qk()
    for h in range(2):
        a(f's_add_u32 m0, s57, {4096*h}'); a(f's_add_u32 s58, s56, {4096*h}')
        for i in range(4): a(f'buffer_load_dwordx4 v{V_VG}, s[{S_V}:{S_V+3}], s58 offen offset:{1024*i} lds')
    a('s_waitcnt vmcnt(0)')
    for db in range(8):
        for kb in range(2):
            a(f'ds_read_b64_tr_b16 {R("a",A_V+4*db+2*kb,2)}, v{V_VA+db//2} offset:{kb*4096+(db&1)*8}')
    qkm()
    for k in range(8): a(f'v_fma_f32 v{S0+k}, v{S0+k}, v{V_C}, -v{M}')
    for k in range(8): a(f'v_exp_f32 v{S0+k}, v{S0+k}')
    a('s_nop 0')
    for k in range(4): a(f'v_cvt_pk_bf16_f32 v{PP+k}, v{S0+2*k}, v{S0+2*k+1}')
    a('s_waitcnt lgkmcnt(0)'); a('s_nop 1')
    for db in range(8):
        d = R('v', O + 4 * db, 4); a(f'v_mfma_f32_16x16x32_bf16 {d}, {R("a",A_V+4*db,4)}, {R("v",PP,4)}, {d}')
    d = R('v', L, 4); a(f'v_mfma_f32_16x16x32_bf16 {d}, {R("v",V_ONE,4)}, {R("v",PP,4)}, {d}')
    a('s_nop 7')
    a('s_add_u32 s56, s56, 8192'); a('s_cmp_lt_u32 s56, 131072'); a('s_cbranch_scc1 L_fb_pv')
    a('s_nop 7')
    a(f'v_rcp_f32 v{L+1}, v{L}'); a('s_nop 0')
    for k in range(32): a(f'v_mul_f32 v{O+k}, v{L+1}, v{O+k}')
    for m in range(4):
        b = O + 8 * m
        for x in range(4): a(f'v_cvt_pk_bf16_f32 v{b+x}, v{b+2*x}, v{b+2*x+1}')
        a(f'buffer_store_dwordx4 {R("v",b,4)}, v{V_QO}, s[{S_O}:{S_O+3}], s55 offen offset:{64*m}')
    a('s_waitcnt vmcnt(0)')
    a('s_add_u32 s55, s55, 4096'); a('s_cmp_lt_u32 s55, 49152'); a('s_cbranch_scc1 L_fb_q')
    return o

def isize(t):
    op = t.split()[0]
    if op.startswith(('v_mfma', 'ds_', 'buffer_', 'global_', 'v_cvt_pk', 'v_writelane', 's_mem', 'v_lshl_add', 'v_max3', 'v_fma', 'v_pk')): return 8
    m = re.search(r'0x([0-9a-f]+)', t)
    return 8 if m and int(m.group(1), 16) > 64 else 4

def build(fn, p):
    pro1, pro, body, nst = gen(p)
    o = [HEADER.rstrip('\n'), '.amdgcn_target "amdgcn-amd-amdhsa--gfx950"', '.text', f'.globl {NAME}_kernel', '.p2align 8',
         f'.type {NAME}_kernel,@function', f'{NAME}_kernel:']
    o += setup(p)
    if p.stamps: o += [f'v_mov_b32 v{V_ST0}, s84', f'v_mov_b32 v{V_ST1}, s86']
    o += [x.txt for x in pro1]
    o += setup2(p)
    o += [x.txt for x in pro]
    bt = []; offs = 4; pg = 1; prev = None
    for x in body:
        if offs >= 4096 * pg and prev is not None and (prev.kind == 'mfma' or offs >= 4096 * pg + 40):
            bt.append(('PG', pg)); offs += 4; pg += 1
        bt.append(x.txt); offs += isize(x.txt); prev = x
    npg = pg
    o += ['s_mov_b64 vcc, -1']
    for w in range(3): o += [f's_cmp_eq_u32 s{S_WAVE}, {w}', f's_cbranch_scc1 L_pg{w+1}']
    o += ['s_branch L_pg4', '.p2align 12', 'L_body:', 's_mov_b64 vcc, 0']
    for x in bt:
        if isinstance(x, tuple):
            q = x[1]; o += [f'L_pg{q}:', f's_cbranch_vccnz ' + (f'L_pg{q+4}' if q + 4 < npg else 'L_body')]
        else: o.append(x)
    if p.stamps and p.dbg:
        o += ['s_load_dwordx2 s[64:65], s[0:1], 32', 's_waitcnt lgkmcnt(0)', 's_mov_b32 s66, 64', 's_mov_b32 s67, 0x20000', f'v_lshlrev_b32 v{V_X}, 3, v0',
              f'v_not_b32 v{V_ST0}, v{V_ST1}',
              f'buffer_atomic_umax v{V_ST1}, v{V_X}, s[64:67], 0 offen', f'buffer_atomic_umax v{V_ST0}, v{V_X}, s[64:67], 0 offen offset:4']
    elif p.stamps:
        o += ['s_lshl_b32 s50, s2, 2', f's_add_u32 s50, s50, s{S_WAVE}', 's_lshl_b32 s50, s50, 9',
              's_mov_b32 s66, 0x100000', 's_mov_b32 s67, 0x20000', f'v_lshlrev_b32 v{V_X}, 2, v0',
              f'buffer_store_dword v{V_ST0}, v{V_X}, s[64:67], s50 offen', f'buffer_store_dword v{V_ST1}, v{V_X}, s[64:67], s50 offen offset:256']
    rng = 0 if p.forcefb else L_RANGE
    o += [f'v_cmp_lt_u32 vcc, 0x{rng:x}, v{V_BAD}', 's_nop 4', 's_cbranch_vccz L_end']
    o += fallback(p)
    o += ['L_end:', 's_endpgm', '.section .rodata,"a"', '.p2align 6', f'.amdhsa_kernel {NAME}_kernel',
          '  .amdhsa_next_free_vgpr 512', '  .amdhsa_next_free_sgpr 96', '  .amdhsa_accum_offset 256',
          '  .amdhsa_group_segment_fixed_size 0', '  .amdhsa_kernarg_size 48', '  .amdhsa_user_sgpr_count 2',
          '  .amdhsa_user_sgpr_kernarg_segment_ptr 1', '  .amdhsa_system_sgpr_workgroup_id_x 1', '.end_amdhsa_kernel']
    open(fn, 'w').write('\n'.join(o) + '\n')
    return nst

def parse(argv):
    ap = argparse.ArgumentParser()
    ap.add_argument('-o', default=f'cdna_kernels/{NAME}.s')
    ap.add_argument('--off', default='0,1,2,3')
    ap.add_argument('--stamps', action='store_true'); ap.add_argument('--stevery', type=int, default=1); ap.add_argument('--stfirst', type=int, default=0)
    for k, v in dict(DV=4, DK=4, DQ=10, DQ0=3, KLAT=3, pf=4, EW=300, bargap=1, QRW=20).items(): ap.add_argument('--' + k, type=int, default=v)
    ap.add_argument('--pro', default='K0,V0,Q0,K1,|,S0,Q1,K2,V1,S1,T,B,R0,W,Q2,K3,S2')
    ap.add_argument('--kpol', default='nt'); ap.add_argument('--vpol', default=',,'); ap.add_argument('--qpol', default='nt'); ap.add_argument('--opol', default='nt')
    ap.add_argument('--nospare', action='store_true'); ap.add_argument('--taillds', action='store_true'); ap.add_argument('--pk', action='store_true')
    ap.add_argument('--dbg', action='store_true'); ap.add_argument('--ko', default=''); ap.add_argument('--forcefb', action='store_true'); ap.add_argument('-q', action='store_true')
    a = ap.parse_args(argv)
    pol = lambda x: (' ' + x.replace('+', ' ')).rstrip()
    a.off = tuple(int(x) for x in a.off.split(','))
    a.kpol = pol(a.kpol); a.qpol = pol(a.qpol); a.opol = pol(a.opol); a.vpol = tuple(pol(x) for x in a.vpol.split(','))
    a.spare = not a.nospare; a.verbose = not a.q
    return a

if __name__ == '__main__':
    a = parse(sys.argv[1:])
    n = build(a.o, a)
    if a.stamps: print('stamps', n)
```

```python
import re

def regs(t, lo, n=1):
    return [(t, lo + i) for i in range(n)]

def R(t, lo, n=1):
    return f'{t}{lo}' if n == 1 else f'{t}[{lo}:{lo+n-1}]'

class I:
    __slots__ = ('txt', 'kind', 'rd', 'wr', 'cost', 'grp', 'need', 'tok', 'srcc', 'note')
    def __init__(self, txt, kind, rd=(), wr=(), cost=1, grp=None, need=(), tok=None, srcc=()):
        self.txt = txt; self.kind = kind; self.rd = list(rd); self.wr = list(wr)
        self.cost = cost; self.grp = grp; self.need = list(need); self.tok = tok; self.srcc = list(srcc)
        self.note = ''
    def cls(self):
        if self.kind in ('salu', 'wait', 'barrier', 'nop', 'anchor'): return 0
        if self.kind in ('ds_rd', 'ds_wr', 'vm_ld', 'vm_dma', 'vm_st'): return 1
        return 2

def mfma16(d, a, b, c):
    ct = '0' if c is None else R(c[0], c[1], 4)
    rd = regs(a[0], a[1], 4) + regs(b[0], b[1], 4)
    sc = [] if c is None else regs(c[0], c[1], 4)
    return I(f'v_mfma_f32_16x16x32_bf16 {R(d[0],d[1],4)}, {R(a[0],a[1],4)}, {R(b[0],b[1],4)}, {ct}', 'mfma',
             rd=rd, wr=regs(d[0], d[1], 4), srcc=sc)

def valu(txt, rd, wr, cost=1, kind='valu'):
    return I(txt, kind, rd=[('v', x) for x in rd], wr=[('v', x) for x in wr], cost=cost)

def salu(txt, wr=(), rd=()):
    return I(txt, 'salu', rd=rd, wr=wr)

VM = ('vm_ld', 'vm_dma', 'vm_st')
DS = ('ds_rd', 'ds_wr')

def insert_waits(seq, verbose=False):
    out = []
    vmq = []
    dsq = []
    pend = {}
    tokpos = {}
    grp_members = {}
    for ins in seq:
        if ins.grp is not None:
            grp_members.setdefault(ins.grp, []).append(ins)
    issued = set()
    done = set()
    def covered(op): return id(op) in done
    nwaits = 0
    for ins in seq:
        needs = []
        for r in ins.rd + ins.wr + ins.srcc:
            op = pend.get(r)
            if op is not None and not covered(op) and op is not ins:
                needs.append(op)
        for t in ins.need:
            for op in tokpos.get(t, []):
                if not covered(op): needs.append(op)
        if needs:
            ext = []
            for op in needs:
                ext.append(op)
                if op.grp is not None:
                    for m in grp_members[op.grp]:
                        if id(m) in issued and not covered(m): ext.append(m)
            pos = len(out)
            k = len(out) - 1
            ids = set(id(o) for o in ext)
            hoist = None
            while k >= 0:
                o = out[k]
                if o.kind == 'mfma': hoist = k + 1; break
                if id(o) in ids or o.kind in ('label', 'branch', 'barrier'): break
                k -= 1
            if hoist is not None: pos = hoist
            after = set(id(o) for o in out[pos:])
            def cnt(q, kinds):
                tg = [i for i, o in enumerate(q) if id(o) in ids]
                if not tg: return None
                last = max(tg)
                n = sum(1 for o in q[last + 1:] if id(o) not in after)
                return last, n
            parts = []
            a = cnt(vmq, VM)
            if a is not None:
                last, n = a
                assert n <= 63, 'vmcnt overflow'
                parts.append(f'vmcnt({n})')
                for o in vmq[:last + 1]: done.add(id(o))
                del vmq[:last + 1]
            a = cnt(dsq, DS)
            if a is not None:
                last, n = a
                if n > 15:
                    last += n - 15; n = 15
                parts.append(f'lgkmcnt({n})')
                for o in dsq[:last + 1]: done.add(id(o))
                del dsq[:last + 1]
            if parts:
                w = I('s_waitcnt ' + ' '.join(parts), 'wait')
                out.insert(pos, w); nwaits += 1
        out.append(ins)
        issued.add(id(ins))
        if ins.kind in VM:
            vmq.append(ins)
            assert len(vmq) <= 63, f'too many outstanding vm ops at {ins.txt}'
        if ins.kind in DS: dsq.append(ins)
        if ins.kind in ('vm_ld', 'ds_rd'):
            for r in ins.wr: pend[r] = ins
        if ins.tok is not None: tokpos.setdefault(ins.tok, []).append(ins)
        if ins.kind == 'wait':
            m = re.search(r'vmcnt\((\d+)\)', ins.txt)
            if m:
                n = int(m.group(1))
                while len(vmq) > n: done.add(id(vmq.pop(0)))
            m = re.search(r'lgkmcnt\((\d+)\)', ins.txt)
            if m:
                n = int(m.group(1))
                while len(dsq) > n: done.add(id(dsq.pop(0)))
    if verbose: print('waits inserted', nwaits)
    return out

def states(ins):
    if ins.kind == 'nop':
        return int(ins.txt.split()[1]) + 1
    if ins.kind == 'label': return 0
    return 1

def fix_hazards(seq, verbose=False):
    out = []
    npad = 0
    for ins in seq:
        need = 0
        dist = 0
        isv = ins.kind in ('valu', 'trans', 'perm')
        ismem = ins.kind in VM + DS
        rd = set(ins.rd); wr = set(ins.wr); sc = set(ins.srcc)
        for p in reversed(out):
            if dist >= 10: break
            pw = set(p.wr)
            req = 0
            pv = p.kind in ('valu', 'trans', 'perm')
            if pv and ins.kind == 'mfma' and pw & (rd | sc): req = max(req, 2)
            if p.kind == 'mfma':
                if isv and pw & (rd | wr): req = max(req, 8)
                if ismem and pw & (rd | wr): req = max(req, 8)
                if ins.kind == 'mfma':
                    if pw & rd: req = max(req, 8)
                    if pw & sc and pw != sc: req = max(req, 6)
                if isv and set(p.srcc) & wr: req = max(req, 3)
            if p.kind == 'trans' and isv and ins.kind != 'trans' and pw & rd: req = max(req, 1)
            if p.kind == 'trans' and ismem and pw & rd: req = max(req, 1)
            if pv and ins.kind == 'perm' and pw & rd: req = max(req, 2)
            if p.kind == 'salu' and ('s', 'm0') in pw and ins.kind == 'vm_dma': req = max(req, 1)
            if p.kind in ('vm_st', 'ds_wr') and isv and set(p.rd) & wr: req = max(req, 2)
            if p.kind in ('vm_st', 'ds_wr') and ins.kind in ('vm_ld', 'ds_rd', 'mfma') and set(p.rd) & wr: req = max(req, 2)
            if req - dist > need: need = req - dist
            dist += states(p)
        if need > 0:
            out.append(I(f's_nop {need-1}', 'nop')); npad += 1
            if verbose: print('pad', need, 'before', ins.txt)
        out.append(ins)
    if verbose: print('hazard pads', npad)
    return out

class Gaps:
    CAP = 2
    def __init__(self):
        self.bb = []
        self.g = []
        self.extra = []
        self.block = set()
        self.base = {}
    def add(self, m):
        self.bb.append(m); self.g.append([[], [], []]); self.extra.append(0)
        return len(self.bb) - 1
    def load(self, k):
        s, m, v = self.g[k]
        c = max(0, len(s) - 1) + self.base.get(k, 0)
        c += sum(x.cost for x in m) + sum(x.cost for x in v)
        return c
    def put(self, k, ins):
        self.g[k][ins.cls()].append(ins)
    def inc(self, k, ins):
        if ins.cls() == 0: return 0 if not self.g[k][0] else 1
        return ins.cost
    def place(self, items, lo, hi, spread=True):
        assert lo <= hi, (lo, hi, items[0].txt)
        n = hi - lo + 1
        bonus = [0] * n
        total = sum(x.cost for x in items if x.cls() != 0)
        free = [max(0, self.CAP - self.load(lo + i)) for i in range(n)]
        F = sum(free)
        over = max(0, total - F)
        while True:
            bonus = [0] * n
            for j in range(over):
                bonus[(j * n // max(over, 1) + (n // (2 * over) if over <= n else 0)) % n if over <= n else j % n] += 1
            cap = [free[i] + bonus[i] for i in range(n)]
            capsum = sum(cap)
            used = [0] * n
            sal = [len(self.g[lo + i][0]) for i in range(n)]
            res = []
            cur = 0; prevcls = -1; ok = True
            cum = []
            s = 0
            for i in range(n):
                cum.append(s); s += cap[i]
            donecost = 0
            for x in items:
                c = x.cls()
                k = cur
                if c < prevcls: k = cur + 1
                if spread and total > 0 and capsum > total and c != 0:
                    target = donecost * capsum / total
                    while k < n - 1 and cum[k] + cap[k] <= target - 1e-9: k += 1
                while k < n:
                    need = x.cost if c != 0 else (0 if sal[k] == 0 else 1)
                    room = cap[k] - used[k]
                    if need <= room or (need > 2 and room >= 2 and used[k] == 0) : break
                    k += 1
                if k >= n: ok = False; break
                need = x.cost if c != 0 else (0 if sal[k] == 0 else 1)
                used[k] += need
                if c == 0: sal[k] += 1
                res.append(k);
                if k != cur: prevcls = -1
                cur = k; prevcls = max(prevcls, c)
                if c != 0: donecost += x.cost
            if ok: break
            if spread and over == 0 and capsum > total:
                spread = False
                continue
            over += 1
            assert over < 40 * n + 400, ('cannot place', items[0].txt, lo, hi)
        for x, k in zip(items, res): self.put(lo + k, x)
        return [lo + k for k in res]
    def linear(self):
        o = []
        for m, (s, mm, v) in zip(self.bb, self.g):
            o.append(m); o += s; o += mm; o += v
        return o
    def est_cycles(self):
        return sum(max(16, 8 + 4 * self.load(k)) for k in range(len(self.bb)))

class Job:
    __slots__ = ('ins', 'rel', 'dl', 'preds', 'succs', 'gap', 'idx', 'strided')
    def __init__(self, ins, rel, dl, strided=False):
        self.ins = ins; self.rel = rel; self.dl = dl; self.preds = []; self.succs = []; self.gap = None; self.strided = strided

class Sched:
    def __init__(self, G, stride_sp=17, vm_sp=0, vm_after_str=0):
        self.G = G; self.jobs = []; self.sp = stride_sp; self.vm_sp = vm_sp; self.vas = vm_after_str
    def add(self, ins, rel, dl, strided=False):
        j = Job(ins, rel, dl, strided); j.idx = len(self.jobs); self.jobs.append(j); return j
    def dep(self, a, b, delta=None):
        if delta is None: delta = 1 if b.ins.cls() < a.ins.cls() else 0
        b.preds.append((a, delta)); a.succs.append((b, delta))
    def chain(self, items, rel, dl, after=None, strided_kinds=()):
        js = []
        for x in items:
            j = self.add(x, rel, dl, strided=x.kind in strided_kinds)
            if js: self.dep(js[-1], j)
            elif after is not None: self.dep(after, j)
            js.append(j)
        return js
    def run(self):
        G = self.G; NG = len(G.bb)
        ch = True
        while ch:
            ch = False
            for j in reversed(self.jobs):
                for s, d in j.succs:
                    dd = d
                    if s.dl - dd < j.dl: j.dl = s.dl - dd; ch = True
        ch = True
        while ch:
            ch = False
            for j in self.jobs:
                for p, d in j.preds:
                    if p.rel + d > j.rel: j.rel = p.rel + d; ch = True
        for j in self.jobs:
            assert j.rel <= j.dl, ('infeasible', j.ins.txt, j.rel, j.dl)
        import heapq
        todo = set(range(len(self.jobs)))
        byrel = sorted(self.jobs, key=lambda j: j.rel)
        ptr = 0; cand = []
        last_str = -1000; last_vm = -1000
        for k in range(NG):
            while ptr < len(byrel) and byrel[ptr].rel <= k:
                cand.append(byrel[ptr]); ptr += 1
            nds = sum(1 for x in G.g[k][1] if x.kind in DS)
            while True:
                best = None
                room = G.CAP - G.load(k)
                for j in cand:
                    ok = True
                    for p, d in j.preds:
                        if p.gap is None or p.gap + d > k: ok = False; break
                    if not ok: continue
                    forced = j.dl <= k
                    if not forced:
                        if k in G.block: continue
                        c = G.inc(k, j.ins)
                        if c > room and not (c > G.CAP and room >= G.CAP): continue
                        if j.ins.kind in DS and nds >= 1: continue
                        if j.strided and k - last_str < self.sp: continue
                        if j.ins.kind in VM and (k - last_vm < self.vm_sp or k - last_str < self.vas): continue
                    key = (0 if forced else 1, min(j.ins.cls(), 2) // 2, j.dl, j.idx)
                    if best is None or key < best[0]: best = (key, j)
                if best is None: break
                j = best[1]
                G.put(k, j.ins); j.gap = k; cand.remove(j)
                if j.ins.kind in DS: nds += 1
                if j.strided: last_str = k
                if j.ins.kind in VM: last_vm = k
        left = [j for j in self.jobs if j.gap is None]
        assert not left, [j.ins.txt for j in left[:5]]
```

```python
import re, sys, math, struct, argparse
from asmlib import *

NAME = 'standalone__gqa_softmax__near_ridge'
def f2u(x): return struct.unpack('<I', struct.pack('<f', x))[0]
CSC = f2u(math.log2(math.e) / math.sqrt(128.0))

V_QO = 1
V_KG = 3
V_KW = 5
V_VG = 6
V_BAD = 7
V_KA = 8
V_VA = 16
V_ONE = 20
V_S = 24
V_P = 40
V_L = 48
V_O = 64
V_KR = 192
V_QA = 232
V_QG = 236
V_T = 240
V_C = 248
V_ST0 = 249; V_ST1 = 250
V_LIN = 251
V_IDX = 2
V_X = 252
A_Q = 0
A_K = 128
A_V = 192
S_Q, S_K, S_V, S_O = 8, 12, 16, 20
S_WV = 24
S_WAVE = 25
S_QB = 32
S_W4 = 44
S_KT = 68
LDS_K = 32768
LDS_ST = LDS_K + 65536
L_LO = 0x27800000
L_RANGE = 0x57800000 - L_LO

class P: pass

def gen(p):
    off = p.off; DV = p.DV; DK = p.DK
    NKB = DK + 1
    assert V_KR + 8 * NKB <= V_QA
    T = 48 + max(off)
    active = [[s for s in range(4) if off[s] <= t < off[s] + 48] for t in range(T)]
    per = [(t, s) for t in range(T) for s in active[t]]
    NP = len(per)
    first = {}
    for i, (t, s) in enumerate(per): first.setdefault(t, i)
    rnd = lambda t, s: (t - off[s]) // 16
    qreg = lambda s, r: A_Q + 64 * (r % 2) + 16 * s
    Sreg = lambda i, kb: V_S + 8 * (i % 2) + 4 * kb
    Preg = lambda i: V_P + 4 * (i % 2)
    bufs = [(V_O + 32 * b, 0) for b in range(4)] + [(V_KR, 0)]
    obuf = {}; nextuser = {}
    free = [(4, None)] if p.spare else []
    for i, (t, s) in enumerate(per):
        if (t - off[s]) % 16 == 0:
            r = rnd(t, s)
            if r == 0: obuf[(s, 0)] = s
            else:
                free.append((obuf[(s, r - 1)], (s, r - 1)))
                b, prevuser = free.pop(0)
                obuf[(s, r)] = b
                if prevuser is not None: nextuser[prevuser] = i
    Oreg = lambda s, r, db: bufs[obuf[(s, r)]][0] + 4 * db
    G = Gaps()
    assert off[0] == off[1] and off[2] == off[3]
    Lq = lambda s, r: V_L + 8 * (r % 2) + 4 * (s // 2)
    qs, qe, ps, pe, sm = {}, {}, {}, {}, {}
    def emit_pv(i):
        t, s = per[i]; r = rnd(t, s)
        fresh = (t - off[s]) % 16 == 0
        if i % 2 == 1:
            d = Lq(s, r)
            sm[i] = G.add(I(f'v_smfmac_f32_16x16x64_bf16 {R("v",d,4)}, {R("v",V_ONE,4)}, {R("v",V_P,8)}, v{V_IDX}', 'mfma',
                            rd=regs('v', V_ONE, 4) + regs('v', V_P, 8) + [('v', V_IDX)], wr=regs('v', d, 4), srcc=regs('v', d, 4)))
            G.base[sm[i]] = 1
        for db in range(8):
            d = ('v', Oreg(s, r, db))
            k = G.add(mfma16(d, ('a', A_V + 32 * (t % 2) + 4 * db), ('v', Preg(i)), None if fresh else d))
            if db == 0: ps[i] = k
        pe[i] = k
    for i, (t, s) in enumerate(per):
        assert s % 2 == i % 2
        for kb in range(2):
            for j in range(4):
                d = ('v', Sreg(i, kb))
                k = G.add(mfma16(d, ('a', A_K + 32 * (t % 2) + 16 * kb + 4 * j), ('a', qreg(s, rnd(t, s)) + 4 * j), None if j == 0 else d))
                if kb == 0 and j == 0: qs[i] = k
        qe[i] = k
        if i > 0: emit_pv(i - 1)
    emit_pv(NP - 1)
    NG = len(G.bb)
    ex = lambda r: valu(f'v_exp_f32 v{r}, v{r}', [r], [r], cost=2, kind='trans')
    cv = lambda d, a, b: valu(f'v_cvt_pk_bf16_f32 v{d}, v{a}, v{b}', [a, b], [d])
    for i in range(NP):
        a, b, pp = Sreg(i, 0), Sreg(i, 1), Preg(i)
        if i > 0:
            g = ps[i - 1]
            G.put(qs[i] + 7, ex(a))
            for k in range(1, 4): G.put(g + 2 * k - 1, ex(a + k))
            G.put(g + 2, cv(pp, a, a + 1)); G.put(g + 6, cv(pp + 1, a + 2, a + 3))
            G.put(g + 7, ex(b))
        if i < NP - 1:
            g1 = qs[i + 1]
            for k in range(1, 4): G.put(g1 + 2 * k - 1, ex(b + k))
            if i > 0: G.put(g1 + 4, cv(pp + 2, b, b + 1))
            G.put(g1 + 6, cv(pp + 3, b + 2, b + 3))
    a, b, pp = Sreg(0, 0), Sreg(0, 1), Preg(0)
    G.place([ex(a + k) for k in range(4)] + [cv(pp, a, a + 1), cv(pp + 1, a + 2, a + 3), ex(b)], qs[0] + 7, qs[1] + 5)
    G.put(qs[1] + 6, cv(pp + 2, b, b + 1))
    b, pp = Sreg(NP - 1, 1), Preg(NP - 1)
    G.place([ex(b + k) for k in range(1, 4)] + [cv(pp + 3, b + 2, b + 3)], ps[NP - 2] + 4, pe[NP - 2])
    G.put(pe[NP - 2], cv(pp + 2, b, b + 1))

    A = {t: qs[first[t] + 1] for t in range(T)}
    At = lambda t: 0 if t < 0 else (A[t] if t < T else NG - 1)
    def vslot(t): return LDS_K + 8192 * (t + 3) if t <= 12 else 8192 * (t % 4)
    def kread(u):
        tile = u % 16; st = tile // 8; o = []
        for kb in range(2):
            for j in range(4):
                d = A_K + 32 * (u % 2) + 16 * kb + 4 * j
                o.append(I(f'ds_read_b128 {R("a",d,4)}, v{V_KA+4*st+j} offset:{(tile%8)*8192+kb*4096}', 'ds_rd',
                           rd=[('v', V_KA + 4 * st + j)], wr=regs('a', d, 4), grp=('K', u)))
        return o
    vbase = [0]
    def vread(t):
        o = []
        sl = vslot(t); nb = sl // 65536 * 65536
        if nb != vbase[0]:
            dlt = (nb - vbase[0]) & 0xffffffff
            for m in range(4): o.append(valu(f'v_add_u32 v{V_VA+m}, 0x{dlt:x}, v{V_VA+m}', [V_VA + m], [V_VA + m]))
            vbase[0] = nb
        for db in range(8):
            for kb in range(2):
                d = A_V + 32 * (t % 2) + 4 * db + 2 * kb
                o.append(I(f'ds_read_b64_tr_b16 {R("a",d,2)}, v{V_VA+db//2} offset:{sl-nb+kb*4096+(db&1)*(32 if p.vexp else 8)}', 'ds_rd',
                           rd=[('v', V_VA + db // 2)], wr=regs('a', d, 2), grp=('Vr', t), tok=('Vr', t)))
        return o
    def vdma(t):
        o = [salu(f's_add_u32 m0, s{S_WV}, 0x{vslot(t):x}', wr=[('s', 'm0')])]
        for h in range(2):
            o.append(I(f'buffer_load_dwordx4 v{V_VG}, s[{S_V}:{S_V+3}], s{S_KT+t%16} offen offset:{1024*h}{p.vpol[min(t//16,2)]} lds', 'vm_dma',
                       rd=[('v', V_VG), ('s', 'm0')], tok=('V', t)))
        return o
    def qdma(s):
        o = [salu(f's_add_u32 m0, s{S_W4}, 0x{LDS_ST+16384*s:x}', wr=[('s', 'm0')])]
        for h in range(4):
            o.append(I(f'buffer_load_dwordx4 v{V_QG+h}, s[{S_Q}:{S_Q+3}], s{S_QB+s} offen offset:{1024*h}{p.qpol} lds', 'vm_dma',
                       rd=[('v', V_QG + h), ('s', 'm0')], tok=('Qd', s)))
        return o
    def qread(s):
        o = []
        for j in range(4):
            d = qreg(s, 0) + 4 * j
            o.append(I(f'ds_read_b128 {R("a",d,4)}, v{V_QA+j} offset:{16384*s}', 'ds_rd', rd=[('v', V_QA + j)], wr=regs('a', d, 4),
                       grp=('Qr', s), need=[('Qd', s)]))
        return o
    def kload(u):
        o = []
        for h in range(2):
            d = V_KR + 8 * (u % NKB) + 4 * h
            o.append(I(f'buffer_load_dwordx4 {R("v",d,4)}, v{V_KG+h}, s[{S_K}:{S_K+3}], s{S_KT+u} offen{p.kpol}', 'vm_ld',
                       rd=[('v', V_KG + h)], wr=regs('v', d, 4), grp=('Kraw', u)))
        return o
    kwbase = [0]
    def kscale(u):
        o = []
        nb = u // 8 * 65536
        if nb != kwbase[0]:
            o.append(valu(f'v_add_u32 v{V_KW}, 0x10000, v{V_KW}', [V_KW], [V_KW])); kwbase[0] = nb
        for h in range(2):
            d = V_KR + 8 * (u % NKB) + 4 * h
            for e in range(0, 4, 2):
                t0 = V_T + 4 * ((e // 2) % 2)
                for x in range(2):
                    o.append(valu(f'v_lshlrev_b32 v{t0+2*x}, 16, v{d+e+x}', [d + e + x], [t0 + 2 * x]))
                    o.append(valu(f'v_and_b32 v{t0+2*x+1}, 0xffff0000, v{d+e+x}', [d + e + x], [t0 + 2 * x + 1]))
                for x in range(4):
                    o.append(valu(f'v_mul_f32 v{t0+x}, v{V_C}, v{t0+x}', [V_C, t0 + x], [t0 + x]))
                for x in range(2):
                    o.append(cv(d + e + x, t0 + 2 * x, t0 + 2 * x + 1))
            o.append(I(f'ds_write_b128 v{V_KW}, {R("v",d,4)} offset:{(u%8)*8192+h*4096}', 'ds_wr',
                       rd=[('v', V_KW)] + regs('v', d, 4), cost=4, tok=('Kw', u)))
        return o
    def qload(s, r):
        n = 4 * r + s; o = []
        for j in range(4):
            d = qreg(s, r) + 4 * j
            o.append(I(f'buffer_load_dwordx4 {R("a",d,4)}, v{V_QO}, s[{S_Q}:{S_Q+3}], s{S_QB+n} offen offset:{64*j}{p.qpol}',
                       'vm_ld', rd=[('v', V_QO)], wr=regs('a', d, 4), grp=('Q', s, r)))
        return o
    def epilogue(s, r, lds=False, pk=False):
        n = 4 * r + s; l = Lq(s, r) + 2 * (s % 2) - 2; o = []
        o.append(valu(f'v_add_f32 v{l+3}, v{l+2}, v{l+3}', [l + 2, l + 3], [l + 3]))
        o.append(valu(f'v_rcp_f32 v{l+2}, v{l+3}', [l + 3], [l + 2], cost=2, kind='trans'))
        o.append(valu(f'v_subrev_u32 v{l+3}, 0x{L_LO:x}, v{l+3}', [l + 3], [l + 3]))
        o.append(valu(f'v_max_u32 v{V_BAD}, v{V_BAD}, v{l+3}', [V_BAD, l + 3], [V_BAD]))
        for m in range(4):
            b = Oreg(s, r, 2 * m)
            if pk:
                for x in range(0, 8, 2):
                    o.append(valu(f'v_pk_mul_f32 {R("v",b+x,2)}, {R("v",b+x,2)}, {R("v",l+2,2)} op_sel_hi:[1,0]', [l + 2, b + x, b + x + 1], [b + x, b + x + 1]))
            else:
                for x in range(8): o.append(valu(f'v_mul_f32 v{b+x}, v{l+2}, v{b+x}', [l + 2, b + x], [b + x]))
            for x in range(4): o.append(cv(b + x, b + 2 * x, b + 2 * x + 1))
            if lds:
                o.append(I(f'ds_write_b128 v{V_QA+m}, {R("v",b,4)} offset:{16384*s}', 'ds_wr', rd=[('v', V_QA + m)] + regs('v', b, 4), cost=4))
            else:
                o.append(I(f'buffer_store_dwordx4 {R("v",b,4)}, v{V_QO}, s[{S_O}:{S_O+3}], s{S_QB+n} offen offset:{64*m}{p.opol[r]}',
                           'vm_st', rd=[('v', V_QO)] + regs('v', b, 4), cost=3))
        if lds:
            for i in range(4):
                b = Oreg(s, r, 2 * i + 1)
                o.append(I(f'ds_read_b128 {R("v",b,4)}, v{V_LIN} offset:{16384*s+1024*i}', 'ds_rd', rd=[('v', V_LIN)], wr=regs('v', b, 4)))
            for i in range(4):
                b = Oreg(s, r, 2 * i + 1)
                o.append(I(f'buffer_store_dwordx4 {R("v",b,4)}, v{V_QG+i}, s[{S_O}:{S_O+3}], s{S_QB+n} offen offset:{1024*i}{p.opol[r]}',
                           'vm_st', rd=[('v', V_QG + i)] + regs('v', b, 4), cost=3))
        return o
    nst = [1]
    def stamp(final=False):
        if not p.stamps or (p.light and not final): return []
        k = nst[0]; nst[0] += 1
        assert k < 64
        return [I('s_memtime s[60:61]', 'salu'), I('s_memrealtime s[62:63]', 'salu'), I('s_waitcnt lgkmcnt(0)', 'wait'),
                I(f'v_writelane_b32 v{V_ST0}, s60, {k}', 'salu'), I(f'v_writelane_b32 v{V_ST1}, s62, {k}', 'salu')]
    pub, wr, kwin = {}, {}, {}
    for u in range(1, T):
        t = u - 1
        hi = qs[first[u]] - 1
        if u < 16 and len(active[t]) >= 3:
            pub[u] = t; lo = A[t]
        else:
            if u < 16: pub[u] = t - 1
            lo = qs[first[t]]
        kwin[u] = (lo, hi - 6 if hi - lo > 20 else hi)
    pub[0] = -1
    for u in range(16): wr[u] = pub[u] - 1
    for u in range(16): assert wr[u] >= u - 3
    pro1, pro = [], []
    cur = pro1
    cur += stamp()
    dK, dV, dQ, dS, dR = set(), set(), set(), set(), set()
    for tok in p.pro.split(','):
        c = tok[0]
        if c == '|': cur = pro; continue
        if c == 'T': cur += stamp(); continue
        if c == 'B':
            assert all(u in dS for u in range(16) if pub[u] < 0) and 0 in dV
            cur.append(I('s_barrier', 'barrier', need=[('Kw', u) for u in dS] + [('V', 0)]))
            cur += kread(0); continue
        if c == 'W': cur += vread(0); continue
        if c == 'C': cur.append(I('@CHAIN', 'label')); continue
        n = int(tok[1:])
        if c == 'K':
            assert n < NKB or (n - NKB) in dS
            dK.add(n); cur += kload(n)
        elif c == 'V': dV.add(n); cur += vdma(n)
        elif c == 'Q': dQ.add(n); cur += qdma(n)
        elif c == 'S': assert n in dK; dS.add(n); cur += kscale(n)
        elif c == 'R': assert n in dQ; dR.add(n); cur += qread(n)
    assert 0 in dR and 1 in dV
    two = lambda t: p.bar2 and t >= p.bar2
    for t in range(T - 1):
        need = [('V', t + 1), ('Vr', t)] + [('Kw', u) for u in range(16) if pub[u] == t]
        if two(t):
            if (t - p.bar2) % 2: continue
            need += [('V', t + 2), ('Vr', t - 1)]
        if t < p.stfirst or t % p.stevery == 0:
            for x in stamp(): G.put(A[t], x)
        if t > 0: G.put(A[t] - 1, I('', 'anchor', need=need))
        G.put(A[t], I('s_barrier', 'barrier', need=need))
        if p.bargap: G.block.add(A[t])
    S = Sched(G, p.SSP, p.VSP, p.VAS)
    for t in range(T - 1):
        lo, hi = A[t], A[t + 1] - 1
        S.chain(kread(t + 1), *kwin[t + 1])
        S.chain(vread(t + 1), lo, hi - 8 if hi - lo > 30 else hi - 2)
    dm = []
    nv = 0
    for t in range(T):
        if t in dV: continue
        w = t - 1 - DV if t <= 16 else t - 4
        if two(w) and (w - p.bar2) % 2: w += 1
        w = max(w, nv // 2 - 1); nv += 1
        if 5 <= t <= 12:
            s = (t - 5) // 2
            w = max(w, off[s] + (1 if s > 0 else 0))
        assert w <= t - 2, (t, w)
        dm.append((w, t - 1, 'V', t))
    for s in range(4):
        if s not in dQ: dm.append((max(-1, off[s] - p.DQ0), off[s] - 0.5, 'Q', s))
    dm.sort()
    prev = None; qd = {}
    for (w, _, c, n) in dm:
        js = S.chain(vdma(n) if c == 'V' else qdma(n), At(w), max(At(w) + 2, min(At(w) + p.DMAW, At(w + 1) - 1)), after=prev)
        if At(w + 1) - At(w) > 8: S.dep(js[0], js[1], 1)
        prev = js[-1]
        if c == 'Q': qd[n] = prev
    for s in range(4):
        if s in dR: continue
        i0 = per.index((off[s], s))
        js = S.chain(qread(s), max(0, qs[i0] - p.QRW), qs[i0] - 4)
        if s in qd: S.dep(qd[s], js[0], 1)
    prev = None; kw = {}; kl = {}; kiss = {}
    nk = 0
    for u in range(16):
        if u in dK: kiss[u] = -2
        else:
            kiss[u] = max(wr[u] - DK, nk // 2 - 1); nk += 1
    for u in range(16):
        if u not in dK:
            kl[u] = S.chain(kload(u), At(kiss[u]), At(kiss[u] + 1) + 20)
            if u - NKB in kw: S.dep(kw[u - NKB], kl[u][0], 1)
        if u in dS: continue
        dl = At(pub[u]) - (6 if At(pub[u]) - At(pub[u] - 1) > 20 else 2)
        rel = min(At(kiss[u] + p.KLAT), At(wr[u]))
        js = S.chain(kscale(u), rel, dl, after=prev)
        if u in kl: S.dep(kl[u][-1], js[0], 1)
        for j in js:
            if j.ins.kind == 'ds_wr':
                j.rel = max(j.rel, At(u - 3))
        prev = js[-1]; kw[u] = js[-1]
    for r in (1, 2):
        items = []
        for s in range(4): items += [(x, off[s] + 16 * r) for x in qload(s, r)]
        lo = At(16 * r - (p.DQ if r == 1 else p.DQ2)); hi = At(off[3] + 16 * r - 4)
        prevj = None
        for k, (x, need) in enumerate(items):
            rel = lo + (hi - lo) * k // 16
            if p.bar2:
                w = max(t for t in range(T) if At(t) <= rel)
                if two(w) and (w - p.bar2) % 2: rel = At(w + 1) + 6
            j = S.add(x, min(rel, At(need - 4)), At(need - 3), strided=True)
            if prevj: S.dep(prevj, j)
            prevj = j
    tail = []; epi0 = {}
    for i, (t, s) in enumerate(per):
        if (t - off[s]) % 16 == 15:
            r = rnd(t, s)
            lo = max(pe[i], sm[i | 1]) + 3
            lds = p.taillds and r == 2
            if (s, r) in nextuser: hi = ps[nextuser[(s, r)]] - 2
            else: hi = min(NG - 1, lo + (p.EW if r < 2 else 75))
            if hi - lo < 12: tail += epilogue(s, r, lds, pk=p.pk); continue
            js = S.chain(epilogue(s, r, lds), lo, hi, strided_kinds=() if lds else ('vm_st',))
            if r == 0: epi0[s] = js[-1]
            if lds:
                rds = [j for j in js if j.ins.kind == 'ds_rd']; sts = [j for j in js if j.ins.kind == 'vm_st']
                S.dep(rds[-1], sts[0], min(6, (hi - lo) // 4))
            else:
                st = [j for j in js if j.ins.kind == 'vm_st']
                for m, j in enumerate(st): j.dl = hi - min(17, (hi - lo) // 4) * (3 - m)
    for s in range(4):
        i2 = per.index((off[s] + 32, s | 1))
        for x in range(2):
            rr = Lq(s, 0) + 2 * (s % 2) + x
            j = S.add(valu(f'v_mov_b32 v{rr}, 0', [], [rr]), At(off[s] + 18), sm[i2] - 2)
            S.dep(epi0[s], j, 0)
    S.run()
    body = G.linear()
    if p.verbose:
        print('gaps', NG, 'est cycles', G.est_cycles(), file=sys.stderr)
        ov = []
        for t in range(T):
            lo, hi = A[t], (A[t + 1] if t + 1 < T else NG)
            ov.append('%d/%d' % (sum(max(0, G.load(k) - 2) for k in range(lo, hi)), sum(max(0, 2 - G.load(k)) for k in range(lo, hi))))
        print('overflow/free slots per window:', ' '.join(ov), file=sys.stderr)
    tail += stamp()
    if p.stamps: tail += [I('s_waitcnt vmcnt(0)', 'wait')] + stamp(True)
    mark1 = I('', 'label'); mark2 = I('', 'label')
    seq = pro1 + [mark1] + pro + [mark2] + body + tail
    seq = insert_waits(seq)
    seq = [x for x in seq if x.kind != 'anchor']
    if p.ko:
        nb = 0; out = []
        for x in seq:
            if x.kind == 'barrier': nb += 1
            if nb > 38:
                if 'bar' in p.ko and x.kind == 'barrier': continue
                if 'dma' in p.ko and x.kind == 'vm_dma': continue
                if 'vr' in p.ko and x.txt.startswith('ds_read_b64'): continue
                if 'kr' in p.ko and x.txt.startswith('ds_read_b128'): continue
                if 'wait' in p.ko and x.kind == 'wait' and 'lgkmcnt(0)' not in x.txt: continue
                if 'exp' in p.ko and x.kind == 'trans': continue
            out.append(x)
        seq = out
    seq = fix_hazards(seq)
    k1 = seq.index(mark1); k2 = seq.index(mark2)
    return seq[:k1], seq[k1 + 1:k2], seq[k2 + 1:], nst[0]

HEADER = f'''; Kernarg layout for this problem (48 bytes, ptrs only, base s[0:1]):
; @launch grid=(256,1,1) block=(256,1,1) lds=163840
'''

def setup(p):
    o = []; a = o.append; x = V_X
    if p.stamps: a('s_memtime s[84:85]'); a('s_memrealtime s[86:87]')
    a('s_cmp_ge_u32 s2, 256'); a('s_cbranch_scc1 L_end')
    a('s_load_dwordx4 s[4:7], s[0:1], 0')
    a('s_load_dwordx4 s[28:31], s[0:1], 16')
    if p.stamps: a('s_load_dwordx2 s[64:65], s[0:1], 40')
    if p.pf:
        a('s_getpc_b64 s[52:53]'); a('L_pc:')
        a('s_lshr_b32 s54, s2, 3'); a(f's_and_b32 s54, s54, {p.pf-1}'); a('s_lshl_b32 s54, s54, 15')
        a(f'v_lshl_add_u32 v{V_T}, v0, 7, s54'); a(f'v_min_u32 v{V_T}, L_fb-L_pc, v{V_T}')
        a(f'v_mov_b32 v{V_T+1}, s53'); a(f'v_add_co_u32 v{V_T}, vcc, s52, v{V_T}'); a('s_nop 1'); a(f'v_addc_co_u32 v{V_T+1}, vcc, 0, v{V_T+1}, vcc')
        a(f'global_load_dword v{V_T+2}, v[{V_T}:{V_T+1}], off')
    a(f'v_lshrrev_b32 v{x}, 6, v0')
    a('v_and_b32 v0, 63, v0')
    a(f'v_readfirstlane_b32 s{S_WAVE}, v{x}')
    a('s_and_b32 s26, s2, 7'); a('s_lshr_b32 s27, s2, 4'); a('s_lshl_b32 s27, s27, 3'); a('s_or_b32 s26, s26, s27')
    a('s_bfe_u32 s27, s2, 0x10003')
    a('s_lshl_b32 s48, s26, 1'); a('s_add_u32 s48, s48, s27'); a('s_lshl_b32 s48, s48, 2'); a(f's_add_u32 s48, s48, s{S_WAVE}')
    a('s_mul_i32 s48, s48, 49152')
    a('s_lshl_b32 s49, s26, 17')
    a(f's_lshl_b32 s{S_WV}, s{S_WAVE}, 11'); a(f's_lshl_b32 s{S_W4}, s{S_WAVE}, 12')
    for t in range(12): a(f's_mov_b32 s{S_QB+t}, {4096*t}')
    for t in range(16): a(f's_mov_b32 s{S_KT+t}, {8192*t}')
    a(f'v_and_b32 v{x}, 15, v0')
    a(f'v_lshrrev_b32 v{x+1}, 4, v0')
    a(f's_lshl_b32 s50, s{S_WAVE}, 10')
    a(f'v_lshl_add_u32 v{V_KG}, v0, 4, s50'); a(f'v_add_u32 v{V_KG+1}, 0x1000, v{V_KG}')
    a(f'v_lshlrev_b32 v{x+2}, 2, v{x+1}'); a(f'v_xor_b32 v{x+2}, v{x+2}, v{x}'); a(f'v_lshlrev_b32 v{x+2}, 4, v{x+2}')
    a(f'v_lshl_add_u32 v{x+2}, v{x+1}, 8, v{x+2}'); a(f'v_add_u32 v{V_VG}, s{S_WV}, v{x+2}')
    a(f'v_xor_b32 v{x+2}, v{x+1}, v{x}'); a(f'v_lshlrev_b32 v{x+3}, 8, v{x+1}')
    for i in range(4):
        a(f'v_xor_b32 v{V_QG+i}, {4*i}, v{x+2}'); a(f'v_lshl_add_u32 v{V_QG+i}, v{V_QG+i}, 4, v{x+3}')
    for sr, n in ((S_K, 131072), (S_V, 131072), (S_Q, 49152), (S_O, 49152)):
        a(f's_mov_b32 s{sr+2}, {n}'); a(f's_mov_b32 s{sr+3}, 0x20000')
    a('s_waitcnt lgkmcnt(0)')
    for (sr, lo, offs) in ((S_K, 6, 49), (S_V, 28, 49), (S_Q, 4, 48), (S_O, 30, 48)):
        a(f's_add_u32 s{sr}, s{lo}, s{offs}'); a(f's_addc_u32 s{sr+1}, s{lo+1}, 0')
    return o

def setup2(p):
    o = []; a = o.append; x = V_X
    a(f'v_lshlrev_b32 v{V_QO}, 8, v{x}'); a(f'v_lshl_add_u32 v{V_QO}, v{x+1}, 4, v{V_QO}')
    a(f's_lshl_b32 s50, s{S_WAVE}, 2')
    a(f'v_add_u32 v{x+2}, s50, v{x+1}'); a(f'v_xor_b32 v{x+3}, v{x+2}, v{x}'); a(f'v_lshlrev_b32 v{x+3}, 4, v{x+3}')
    a(f'v_lshl_add_u32 v{x+3}, v{x+2}, 8, v{x+3}'); a(f'v_add_u32 v{V_KW}, 0x{LDS_K:x}, v{x+3}')
    a(f'v_xor_b32 v{x+3}, v{x+1}, v{x}')
    for j in range(4):
        a(f'v_xor_b32 v{x+2}, {4*j}, v{x+3}'); a(f'v_lshlrev_b32 v{x+2}, 4, v{x+2}')
        a(f'v_lshl_add_u32 v{x+2}, v{x}, 8, v{x+2}'); a(f'v_add_u32 v{V_KA+j}, 0x{LDS_K:x}, v{x+2}')
        a(f'v_add_u32 v{V_KA+4+j}, 0x{LDS_K+65536:x}, v{x+2}')
        a(f'v_add_u32 v{V_QA+j}, s{S_W4}, v{V_KA+4+j}')
    a(f's_add_u32 s50, s{S_W4}, 0x{LDS_ST:x}'); a(f'v_lshl_add_u32 v{V_LIN}, v0, 4, s50')
    a(f'v_lshrrev_b32 v{x+2}, 2, v0'); a(f'v_and_b32 v{x+3}, 3, v{x+2}'); a(f'v_and_b32 v{x}, 3, v0')
    a(f'v_lshlrev_b32 v{x}, 4, v{x}'); a(f'v_lshl_add_u32 v{x}, v{x+2}, 8, v{x}')
    if p.vexp:
        a(f'v_and_b32 v{x+3}, 7, v{x+2}'); a(f'v_and_b32 v{x}, 3, v0'); a(f'v_lshlrev_b32 v{x}, 3, v{x}'); a(f'v_lshl_add_u32 v{x}, v{x+2}, 8, v{x}')
    for m in range(4):
        if p.vexp: a(f'v_xor_b32 v{x+2}, {2*m}, v{x+3}'); a(f'v_lshl_add_u32 v{V_VA+m}, v{x+2}, 5, v{x}')
        else: a(f'v_xor_b32 v{x+2}, {m}, v{x+3}'); a(f'v_lshl_add_u32 v{V_VA+m}, v{x+2}, 6, v{x}')
    a(f'v_lshrrev_b32 v{x+2}, 4, v0'); a(f'v_xor_b32 v{x+2}, v{x+2}, v0'); a(f'v_and_b32 v{x+2}, 2, v{x+2}')
    a(f'v_cmp_eq_u32 vcc, 0, v{x+2}'); a(f'v_mov_b32 v{x+3}, 0x3f803f80'); a(f'v_and_b32 v{x+2}, 1, v0')
    for k in range(4): a(f'v_cndmask_b32 v{V_ONE+k}, 0, v{x+3}, vcc')
    a(f'v_cmp_eq_u32 vcc, 0, v{x+2}'); a(f'v_mov_b32 v{x+3}, 0x44444444'); a(f'v_mov_b32 v{V_IDX}, 0xeeeeeeee')
    a(f'v_cndmask_b32 v{V_IDX}, v{V_IDX}, v{x+3}, vcc')
    for k in range(16): a(f'v_mov_b32 v{V_L+k}, 0')
    a(f'v_mov_b32 v{V_C}, 0x{CSC:x}'); a(f'v_mov_b32 v{V_BAD}, 0')
    return o

def fallback(p):
    o = []; a = o.append
    S0, S1, PP, M, O, L = V_S, V_S + 4, V_P, V_T, V_O, V_L
    def qk():
        for kb in range(2):
            for j in range(4):
                a(f'buffer_load_dwordx4 {R("a",A_K+16*kb+4*j,4)}, v{V_QO+kb}, s[{S_K}:{S_K+3}], s56 offen offset:{64*j}')
    def qkm():
        for kb in range(2):
            for j in range(4):
                d = R('v', S0 + 4 * kb, 4)
                a(f'v_mfma_f32_16x16x32_bf16 {d}, {R("a",A_K+16*kb+4*j,4)}, {R("a",4*j,4)}, ' + ('0' if j == 0 else d))
        a('s_nop 7'); a('s_nop 1')
    a('L_fb:')
    a('s_waitcnt vmcnt(0) lgkmcnt(0)')
    a('s_barrier')
    a(f's_lshl_b32 s57, s{S_WAVE}, 13')
    a(f'v_subrev_u32 v{V_VG}, s{S_WV}, v{V_VG}')
    for m in range(4): a(f'v_add_u32 v{V_VA+m}, s57, v{V_VA+m}')
    a(f'v_xor_b32 v{M+2}, 16, v0'); a(f'v_lshlrev_b32 v{M+2}, 2, v{M+2}')
    a(f'v_xor_b32 v{M+3}, 32, v0'); a(f'v_lshlrev_b32 v{M+3}, 2, v{M+3}')
    a(f'v_add_u32 v{V_QO+1}, 0x1000, v{V_QO}')
    for k in range(4): a(f'v_mov_b32 v{V_ONE+k}, 0x3f803f80')
    a('s_mov_b32 s55, 0')
    a('L_fb_q:')
    for j in range(4): a(f'buffer_load_dwordx4 {R("a",4*j,4)}, v{V_QO}, s[{S_Q}:{S_Q+3}], s55 offen offset:{64*j}')
    a(f'v_mov_b32 v{M}, 0xff800000')
    a('s_mov_b32 s56, 0')
    a('L_fb_max:')
    qk(); a('s_waitcnt vmcnt(0)'); qkm()
    for k in range(0, 8, 2): a(f'v_max3_f32 v{M}, v{S0+k}, v{S0+k+1}, v{M}')
    a('s_add_u32 s56, s56, 8192'); a('s_cmp_lt_u32 s56, 131072'); a('s_cbranch_scc1 L_fb_max')
    for k in (2, 3):
        a(f'ds_bpermute_b32 v{M+1}, v{M+k}, v{M}'); a('s_waitcnt lgkmcnt(0)'); a(f'v_max_f32 v{M}, v{M}, v{M+1}')
    a(f'v_mul_f32 v{M}, v{V_C}, v{M}')
    for k in range(32): a(f'v_mov_b32 v{O+k}, 0')
    for k in range(4): a(f'v_mov_b32 v{L+k}, 0')
    a('s_mov_b32 s56, 0')
    a('L_fb_pv:')
    qk()
    for h in range(2):
        a(f's_add_u32 m0, s57, {4096*h}'); a(f's_add_u32 s58, s56, {4096*h}')
        for i in range(4): a(f'buffer_load_dwordx4 v{V_VG}, s[{S_V}:{S_V+3}], s58 offen offset:{1024*i} lds')
    a('s_waitcnt vmcnt(0)')
    for db in range(8):
        for kb in range(2):
            a(f'ds_read_b64_tr_b16 {R("a",A_V+4*db+2*kb,2)}, v{V_VA+db//2} offset:{kb*4096+(db&1)*8}')
    qkm()
    for k in range(8): a(f'v_fma_f32 v{S0+k}, v{S0+k}, v{V_C}, -v{M}')
    for k in range(8): a(f'v_exp_f32 v{S0+k}, v{S0+k}')
    a('s_nop 0')
    for k in range(4): a(f'v_cvt_pk_bf16_f32 v{PP+k}, v{S0+2*k}, v{S0+2*k+1}')
    a('s_waitcnt lgkmcnt(0)'); a('s_nop 1')
    for db in range(8):
        d = R('v', O + 4 * db, 4); a(f'v_mfma_f32_16x16x32_bf16 {d}, {R("a",A_V+4*db,4)}, {R("v",PP,4)}, {d}')
    d = R('v', L, 4); a(f'v_mfma_f32_16x16x32_bf16 {d}, {R("v",V_ONE,4)}, {R("v",PP,4)}, {d}')
    a('s_nop 7')
    a('s_add_u32 s56, s56, 8192'); a('s_cmp_lt_u32 s56, 131072'); a('s_cbranch_scc1 L_fb_pv')
    a('s_nop 7')
    a(f'v_rcp_f32 v{L+1}, v{L}'); a('s_nop 0')
    for k in range(32): a(f'v_mul_f32 v{O+k}, v{L+1}, v{O+k}')
    for m in range(4):
        b = O + 8 * m
        for x in range(4): a(f'v_cvt_pk_bf16_f32 v{b+x}, v{b+2*x}, v{b+2*x+1}')
        a(f'buffer_store_dwordx4 {R("v",b,4)}, v{V_QO}, s[{S_O}:{S_O+3}], s55 offen offset:{64*m}')
    a('s_waitcnt vmcnt(0)')
    a('s_add_u32 s55, s55, 4096'); a('s_cmp_lt_u32 s55, 49152'); a('s_cbranch_scc1 L_fb_q')
    return o

def isize(t):
    op = t.split()[0]
    if op.startswith(('v_mfma', 'v_smfmac', 'ds_', 'buffer_', 'global_', 'v_cvt_pk', 'v_writelane', 's_mem', 'v_lshl_add', 'v_max3', 'v_fma', 'v_pk')): return 8
    m = re.search(r'0x([0-9a-f]+)', t)
    return 8 if m and int(m.group(1), 16) > 64 else 4

def build(fn, p):
    pro1, pro, body, nst = gen(p)
    o = [HEADER.rstrip('\n'), '.amdgcn_target "amdgcn-amd-amdhsa--gfx950"', '.text', f'.globl {NAME}_kernel', '.p2align 8',
         f'.type {NAME}_kernel,@function', f'{NAME}_kernel:']
    o += setup(p)
    if p.stamps: o += [f'v_mov_b32 v{V_ST0}, s84', f'v_mov_b32 v{V_ST1}, s86']
    o += [x.txt for x in pro1]
    o += setup2(p)
    bt = [('PG', 0)]; offs = 4; pg = 1; prev = None
    for x in body:
        if offs >= 4096 * pg and prev is not None and (prev.kind == 'mfma' or offs >= 4096 * pg + 40):
            bt.append(('PG', pg)); offs += 4; pg += 1
        bt.append(x.txt); offs += isize(x.txt); prev = x
    npg = pg
    ch = ['s_mov_b64 vcc, -1']
    for w in range(3): ch += [f's_cmp_eq_u32 s{S_WAVE}, {w}', f's_cbranch_scc1 L_pg{w}']
    ch += ['s_branch L_pg3', 'L_ret:', 's_mov_b64 vcc, 0']
    txt = [x.txt for x in pro]
    if '@CHAIN' not in txt: txt.append('@CHAIN')
    for x in txt:
        if x == '@CHAIN': o += ch
        else: o.append(x)
    o += ['s_branch L_pg0', '.p2align 12']
    for x in bt:
        if isinstance(x, tuple):
            q = x[1]; o += [f'L_pg{q}:', f's_cbranch_vccnz ' + (f'L_pg{q+4}' if q + 4 < npg else 'L_ret')]
        else: o.append(x)
    if p.stamps and p.dbg:
        o += ['s_load_dwordx2 s[64:65], s[0:1], 32', 's_waitcnt lgkmcnt(0)', 's_mov_b32 s66, 64', 's_mov_b32 s67, 0x20000', f'v_lshlrev_b32 v{V_X}, 3, v0',
              f'v_not_b32 v{V_ST0}, v{V_ST1}',
              f'buffer_atomic_umax v{V_ST1}, v{V_X}, s[64:67], 0 offen', f'buffer_atomic_umax v{V_ST0}, v{V_X}, s[64:67], 0 offen offset:4']
    elif p.stamps:
        o += ['s_lshl_b32 s50, s2, 2', f's_add_u32 s50, s50, s{S_WAVE}', 's_lshl_b32 s50, s50, 9',
              's_mov_b32 s66, 0x100000', 's_mov_b32 s67, 0x20000', f'v_lshlrev_b32 v{V_X}, 2, v0',
              f'buffer_store_dword v{V_ST0}, v{V_X}, s[64:67], s50 offen', f'buffer_store_dword v{V_ST1}, v{V_X}, s[64:67], s50 offen offset:256']
    rng = 0 if p.forcefb else L_RANGE
    o += [f'v_cmp_lt_u32 vcc, 0x{rng:x}, v{V_BAD}', 's_nop 4', 's_cbranch_vccz L_end']
    o += fallback(p)
    o += ['L_end:', 's_endpgm', '.section .rodata,"a"', '.p2align 6', f'.amdhsa_kernel {NAME}_kernel',
          '  .amdhsa_next_free_vgpr 512', '  .amdhsa_next_free_sgpr 96', '  .amdhsa_accum_offset 256',
          '  .amdhsa_group_segment_fixed_size 0', '  .amdhsa_kernarg_size 48', '  .amdhsa_user_sgpr_count 2',
          '  .amdhsa_user_sgpr_kernarg_segment_ptr 1', '  .amdhsa_system_sgpr_workgroup_id_x 1', '.end_amdhsa_kernel']
    open(fn, 'w').write('\n'.join(o) + '\n')
    return nst

def parse(argv):
    ap = argparse.ArgumentParser()
    ap.add_argument('-o', default=f'cdna_kernels/{NAME}.s')
    ap.add_argument('--off', default='0,0,2,2')
    ap.add_argument('--stamps', action='store_true'); ap.add_argument('--stevery', type=int, default=1); ap.add_argument('--stfirst', type=int, default=0)
    for k, v in dict(DV=4, DK=4, DQ=10, DQ0=3, DQ2=10, KLAT=3, pf=4, EW=300, bargap=1, bar2=0, SSP=17, VSP=6, VAS=0, DMAW=30, QRW=20).items(): ap.add_argument('--' + k, type=int, default=v)
    ap.add_argument('--pro', default='K0,K1,K2,V0,Q0,|,C,Q1,V1,S0,S1,K3,V2,B,R0,W,S2')
    ap.add_argument('--kpol', default='nt'); ap.add_argument('--vpol', default=',,'); ap.add_argument('--qpol', default='nt'); ap.add_argument('--opol', default='nt,nt,nt')
    ap.add_argument('--nospare', action='store_true'); ap.add_argument('--taillds', action='store_true'); ap.add_argument('--pk', action='store_true')
    ap.add_argument('--vexp', action='store_true'); ap.add_argument('--light', action='store_true'); ap.add_argument('--dbg', action='store_true'); ap.add_argument('--ko', default=''); ap.add_argument('--forcefb', action='store_true'); ap.add_argument('-q', action='store_true')
    a = ap.parse_args(argv)
    pol = lambda x: (' ' + x.replace('+', ' ')).rstrip()
    a.off = tuple(int(x) for x in a.off.split(','))
    a.kpol = pol(a.kpol); a.qpol = pol(a.qpol); a.opol = tuple(pol(x) for x in a.opol.split(',')); a.vpol = tuple(pol(x) for x in a.vpol.split(','))
    if a.light: a.stamps = True
    a.spare = not a.nospare; a.verbose = not a.q
    return a

if __name__ == '__main__':
    a = parse(sys.argv[1:])
    n = build(a.o, a)
    if a.stamps: print('stamps', n)
```

```python
import re

def regs(t, lo, n=1):
    return [(t, lo + i) for i in range(n)]

def R(t, lo, n=1):
    return f'{t}{lo}' if n == 1 else f'{t}[{lo}:{lo+n-1}]'

class I:
    __slots__ = ('txt', 'kind', 'rd', 'wr', 'cost', 'grp', 'need', 'tok', 'srcc', 'note')
    def __init__(self, txt, kind, rd=(), wr=(), cost=1, grp=None, need=(), tok=None, srcc=()):
        self.txt = txt; self.kind = kind; self.rd = list(rd); self.wr = list(wr)
        self.cost = cost; self.grp = grp; self.need = list(need); self.tok = tok; self.srcc = list(srcc)
        self.note = ''
    def cls(self):
        if self.kind in ('salu', 'wait', 'barrier', 'nop', 'anchor'): return 0
        if self.kind in ('ds_rd', 'ds_wr', 'vm_ld', 'vm_dma', 'vm_st'): return 1
        return 2

def mfma16(d, a, b, c):
    ct = '0' if c is None else R(c[0], c[1], 4)
    rd = regs(a[0], a[1], 4) + regs(b[0], b[1], 4)
    sc = [] if c is None else regs(c[0], c[1], 4)
    return I(f'v_mfma_f32_16x16x32_bf16 {R(d[0],d[1],4)}, {R(a[0],a[1],4)}, {R(b[0],b[1],4)}, {ct}', 'mfma',
             rd=rd, wr=regs(d[0], d[1], 4), srcc=sc)

def valu(txt, rd, wr, cost=1, kind='valu'):
    return I(txt, kind, rd=[('v', x) for x in rd], wr=[('v', x) for x in wr], cost=cost)

def salu(txt, wr=(), rd=()):
    return I(txt, 'salu', rd=rd, wr=wr)

VM = ('vm_ld', 'vm_dma', 'vm_st')
DS = ('ds_rd', 'ds_wr')

def insert_waits(seq, verbose=False):
    out = []
    vmq = []
    dsq = []
    pend = {}
    tokpos = {}
    grp_members = {}
    for ins in seq:
        if ins.grp is not None:
            grp_members.setdefault(ins.grp, []).append(ins)
    issued = set()
    done = set()
    def covered(op): return id(op) in done
    nwaits = 0
    for ins in seq:
        needs = []
        for r in ins.rd + ins.wr + ins.srcc:
            op = pend.get(r)
            if op is not None and not covered(op) and op is not ins:
                needs.append(op)
        for t in ins.need:
            for op in tokpos.get(t, []):
                if not covered(op): needs.append(op)
        if needs:
            ext = []
            for op in needs:
                ext.append(op)
                if op.grp is not None:
                    for m in grp_members[op.grp]:
                        if id(m) in issued and not covered(m): ext.append(m)
            pos = len(out)
            k = len(out) - 1
            ids = set(id(o) for o in ext)
            hoist = None
            while k >= 0:
                o = out[k]
                if o.kind == 'mfma': hoist = k + 1; break
                if id(o) in ids or o.kind in ('label', 'branch', 'barrier'): break
                k -= 1
            if hoist is not None: pos = hoist
            after = set(id(o) for o in out[pos:])
            def cnt(q, kinds):
                tg = [i for i, o in enumerate(q) if id(o) in ids]
                if not tg: return None
                last = max(tg)
                n = sum(1 for o in q[last + 1:] if id(o) not in after)
                return last, n
            parts = []
            a = cnt(vmq, VM)
            if a is not None:
                last, n = a
                assert n <= 63, 'vmcnt overflow'
                parts.append(f'vmcnt({n})')
                for o in vmq[:last + 1]: done.add(id(o))
                del vmq[:last + 1]
            a = cnt(dsq, DS)
            if a is not None:
                last, n = a
                if n > 15:
                    last += n - 15; n = 15
                parts.append(f'lgkmcnt({n})')
                for o in dsq[:last + 1]: done.add(id(o))
                del dsq[:last + 1]
            if parts:
                if pos < len(out) and out[pos].kind == 'wait' and out[pos].note == 'auto':
                    cur = dict(re.findall(r'(\w+)\((\d+)\)', out[pos].txt))
                    for k2, v2 in re.findall(r'(\w+)\((\d+)\)', ' '.join(parts)):
                        cur[k2] = str(min(int(v2), int(cur.get(k2, 99))))
                    out[pos].txt = 's_waitcnt ' + ' '.join(f'{k2}({cur[k2]})' for k2 in ('vmcnt', 'lgkmcnt') if k2 in cur)
                else:
                    w = I('s_waitcnt ' + ' '.join(parts), 'wait'); w.note = 'auto'
                    out.insert(pos, w); nwaits += 1
        out.append(ins)
        issued.add(id(ins))
        if ins.kind in VM:
            vmq.append(ins)
            assert len(vmq) <= 63, f'too many outstanding vm ops at {ins.txt}'
        if ins.kind in DS: dsq.append(ins)
        if ins.kind in ('vm_ld', 'ds_rd'):
            for r in ins.wr: pend[r] = ins
        if ins.tok is not None: tokpos.setdefault(ins.tok, []).append(ins)
        if ins.kind == 'wait':
            m = re.search(r'vmcnt\((\d+)\)', ins.txt)
            if m:
                n = int(m.group(1))
                while len(vmq) > n: done.add(id(vmq.pop(0)))
            m = re.search(r'lgkmcnt\((\d+)\)', ins.txt)
            if m:
                n = int(m.group(1))
                while len(dsq) > n: done.add(id(dsq.pop(0)))
    if verbose: print('waits inserted', nwaits)
    return out

def states(ins):
    if ins.kind == 'nop':
        return int(ins.txt.split()[1]) + 1
    if ins.kind == 'label': return 0
    return 1

def fix_hazards(seq, verbose=False):
    out = []
    npad = 0
    for ins in seq:
        need = 0
        dist = 0
        isv = ins.kind in ('valu', 'trans', 'perm')
        ismem = ins.kind in VM + DS
        rd = set(ins.rd); wr = set(ins.wr); sc = set(ins.srcc)
        for p in reversed(out):
            if dist >= 10: break
            pw = set(p.wr)
            req = 0
            pv = p.kind in ('valu', 'trans', 'perm')
            if pv and ins.kind == 'mfma' and pw & (rd | sc): req = max(req, 2)
            if p.kind == 'mfma':
                if isv and pw & (rd | wr): req = max(req, 8)
                if ismem and pw & (rd | wr): req = max(req, 8)
                if ins.kind == 'mfma':
                    if pw & rd: req = max(req, 8)
                    if pw & sc and pw != sc: req = max(req, 6)
                if isv and set(p.srcc) & wr: req = max(req, 3)
            if p.kind == 'trans' and isv and ins.kind != 'trans' and pw & rd: req = max(req, 1)
            if p.kind == 'trans' and ismem and pw & rd: req = max(req, 1)
            if pv and ins.kind == 'perm' and pw & rd: req = max(req, 2)
            if p.kind == 'salu' and ('s', 'm0') in pw and ins.kind == 'vm_dma': req = max(req, 1)
            if p.kind in ('vm_st', 'ds_wr') and isv and set(p.rd) & wr: req = max(req, 2)
            if p.kind in ('vm_st', 'ds_wr') and ins.kind in ('vm_ld', 'ds_rd', 'mfma') and set(p.rd) & wr: req = max(req, 2)
            if req - dist > need: need = req - dist
            dist += states(p)
        if need > 0:
            out.append(I(f's_nop {need-1}', 'nop')); npad += 1
            if verbose: print('pad', need, 'before', ins.txt)
        out.append(ins)
    if verbose: print('hazard pads', npad)
    return out

class Gaps:
    CAP = 2
    def __init__(self):
        self.bb = []
        self.g = []
        self.extra = []
        self.block = set()
        self.base = {}
    def add(self, m):
        self.bb.append(m); self.g.append([[], [], []]); self.extra.append(0)
        return len(self.bb) - 1
    def load(self, k):
        s, m, v = self.g[k]
        c = max(0, len(s) - 1) + self.base.get(k, 0)
        c += sum(x.cost for x in m) + sum(x.cost for x in v)
        return c
    def put(self, k, ins):
        self.g[k][ins.cls()].append(ins)
    def inc(self, k, ins):
        if ins.cls() == 0: return 0 if not self.g[k][0] else 1
        return ins.cost
    def place(self, items, lo, hi, spread=True):
        assert lo <= hi, (lo, hi, items[0].txt)
        n = hi - lo + 1
        bonus = [0] * n
        total = sum(x.cost for x in items if x.cls() != 0)
        free = [max(0, self.CAP - self.load(lo + i)) for i in range(n)]
        F = sum(free)
        over = max(0, total - F)
        while True:
            bonus = [0] * n
            for j in range(over):
                bonus[(j * n // max(over, 1) + (n // (2 * over) if over <= n else 0)) % n if over <= n else j % n] += 1
            cap = [free[i] + bonus[i] for i in range(n)]
            capsum = sum(cap)
            used = [0] * n
            sal = [len(self.g[lo + i][0]) for i in range(n)]
            res = []
            cur = 0; prevcls = -1; ok = True
            cum = []
            s = 0
            for i in range(n):
                cum.append(s); s += cap[i]
            donecost = 0
            for x in items:
                c = x.cls()
                k = cur
                if c < prevcls: k = cur + 1
                if spread and total > 0 and capsum > total and c != 0:
                    target = donecost * capsum / total
                    while k < n - 1 and cum[k] + cap[k] <= target - 1e-9: k += 1
                while k < n:
                    need = x.cost if c != 0 else (0 if sal[k] == 0 else 1)
                    room = cap[k] - used[k]
                    if need <= room or (need > 2 and room >= 2 and used[k] == 0) : break
                    k += 1
                if k >= n: ok = False; break
                need = x.cost if c != 0 else (0 if sal[k] == 0 else 1)
                used[k] += need
                if c == 0: sal[k] += 1
                res.append(k);
                if k != cur: prevcls = -1
                cur = k; prevcls = max(prevcls, c)
                if c != 0: donecost += x.cost
            if ok: break
            if spread and over == 0 and capsum > total:
                spread = False
                continue
            over += 1
            assert over < 40 * n + 400, ('cannot place', items[0].txt, lo, hi)
        for x, k in zip(items, res): self.put(lo + k, x)
        return [lo + k for k in res]
    def linear(self):
        o = []
        for m, (s, mm, v) in zip(self.bb, self.g):
            o.append(m); o += s; o += mm; o += v
        return o
    def est_cycles(self):
        return sum(max(16, 8 + 4 * self.load(k)) for k in range(len(self.bb)))

class Job:
    __slots__ = ('ins', 'rel', 'dl', 'preds', 'succs', 'gap', 'idx', 'strided')
    def __init__(self, ins, rel, dl, strided=False):
        self.ins = ins; self.rel = rel; self.dl = dl; self.preds = []; self.succs = []; self.gap = None; self.strided = strided

class Sched:
    def __init__(self, G, stride_sp=17, vm_sp=0, vm_after_str=0):
        self.G = G; self.jobs = []; self.sp = stride_sp; self.vm_sp = vm_sp; self.vas = vm_after_str
    def add(self, ins, rel, dl, strided=False):
        j = Job(ins, rel, dl, strided); j.idx = len(self.jobs); self.jobs.append(j); return j
    def dep(self, a, b, delta=None):
        if delta is None: delta = 1 if b.ins.cls() < a.ins.cls() else 0
        b.preds.append((a, delta)); a.succs.append((b, delta))
    def chain(self, items, rel, dl, after=None, strided_kinds=()):
        js = []
        for x in items:
            j = self.add(x, rel, dl, strided=x.kind in strided_kinds)
            if js: self.dep(js[-1], j)
            elif after is not None: self.dep(after, j)
            js.append(j)
        return js
    def auto(self, items, rel, dl, strided_kinds=(), state=None):
        st = state if state is not None else {'w': {}, 'r': {}, 'dsw': []}
        js = []
        for x in items:
            j = self.add(x, rel, dl, strided=x.kind in strided_kinds)
            ps = {}
            for r in x.rd + x.wr:
                if r in st['w']: ps[id(st['w'][r])] = st['w'][r]
            for r in x.wr:
                for q in st['r'].get(r, []): ps[id(q)] = q
            if x.kind == 'ds_rd':
                for q in st['dsw']: ps[id(q)] = q
            for q in ps.values():
                d = None
                if q.ins.kind == 'trans': d = 1
                if q.ins.kind in ('vm_st', 'ds_wr') and x.cls() == 2: d = 1
                self.dep(q, j, d)
            for r in x.rd: st['r'].setdefault(r, []).append(j)
            for r in x.wr: st['w'][r] = j; st['r'][r] = []
            if x.kind == 'ds_wr': st['dsw'].append(j)
            js.append(j)
        return js
    def run(self):
        G = self.G; NG = len(G.bb)
        ch = True
        while ch:
            ch = False
            for j in reversed(self.jobs):
                for s, d in j.succs:
                    dd = d
                    if s.dl - dd < j.dl: j.dl = s.dl - dd; ch = True
        ch = True
        while ch:
            ch = False
            for j in self.jobs:
                for p, d in j.preds:
                    if p.rel + d > j.rel: j.rel = p.rel + d; ch = True
        for j in self.jobs:
            assert j.rel <= j.dl, ('infeasible', j.ins.txt, j.rel, j.dl)
        import heapq
        todo = set(range(len(self.jobs)))
        byrel = sorted(self.jobs, key=lambda j: j.rel)
        ptr = 0; cand = []
        last_str = -1000; last_vm = -1000
        for k in range(NG):
            while ptr < len(byrel) and byrel[ptr].rel <= k:
                cand.append(byrel[ptr]); ptr += 1
            nds = sum(1 for x in G.g[k][1] if x.kind in DS)
            while True:
                best = None
                room = G.CAP - G.load(k)
                for j in cand:
                    ok = True
                    for p, d in j.preds:
                        if p.gap is None or p.gap + d > k: ok = False; break
                    if not ok: continue
                    forced = j.dl <= k
                    if not forced:
                        if k in G.block: continue
                        c = G.inc(k, j.ins)
                        if c > room and not (c > 1 and room >= 1): continue
                        if j.ins.kind in DS and nds >= 1: continue
                        if j.strided and k - last_str < self.sp: continue
                        if j.ins.kind in VM and (k - last_vm < self.vm_sp or k - last_str < self.vas): continue
                    key = (0 if forced else 1, min(j.ins.cls(), 2) // 2, j.dl, j.idx)
                    if best is None or key < best[0]: best = (key, j)
                if best is None: break
                j = best[1]
                G.put(k, j.ins); j.gap = k; cand.remove(j)
                if j.ins.kind in DS: nds += 1
                if j.strided: last_str = k
                if j.ins.kind in VM: last_vm = k
        left = [j for j in self.jobs if j.gap is None]
        assert not left, [j.ins.txt for j in left[:5]]
```

```python
import re, sys, math, struct, argparse
from asmlib import *

NAME = 'standalone__gqa_softmax__near_ridge'
def f2u(x): return struct.unpack('<I', struct.pack('<f', x))[0]
CSC = f2u(math.log2(math.e) / math.sqrt(128.0))

V_QO = 1
V_KG = 3
V_KW = 5
V_VG = 6
V_BAD = 7
V_KA = 8
V_VA = 16
V_ONE = 20
V_S = 24
V_P = 40
V_L = 48
V_O = 64
V_KR = 192
V_QA = 232
V_QG = 236
V_T = 240
V_C = 248
V_ST0 = 249; V_ST1 = 250
V_LIN = 251
V_IDX = 2
V_X = 252
A_Q = 0
A_K = 128
A_V = 192
S_Q, S_K, S_V, S_O = 8, 12, 16, 20
S_WV = 24
S_WAVE = 25
S_QB = 32
S_W4 = 44
S_KT = 68
LDS_K = 32768
LDS_ST = LDS_K + 65536
L_LO = 0x27800000
L_RANGE = 0x57800000 - L_LO

class P: pass

def gen(p):
    off = p.off; DV = p.DV; DK = p.DK
    NKB = DK + 1
    assert V_KR + 8 * NKB <= V_QA
    T = 48 + max(off)
    active = [[s for s in range(4) if off[s] <= t < off[s] + 48] for t in range(T)]
    per = [(t, s) for t in range(T) for s in active[t]]
    NP = len(per)
    first = {}
    for i, (t, s) in enumerate(per): first.setdefault(t, i)
    rnd = lambda t, s: (t - off[s]) // 16
    qreg = lambda s, r: A_Q + 64 * (r % 2) + 16 * s
    Sreg = lambda i, kb: V_S + 8 * (i % 2) + 4 * kb
    Preg = lambda i: V_P + 4 * (i % 2)
    bufs = [(V_O + 32 * b, 0) for b in range(4)] + [(V_KR, 0)]
    obuf = {}; nextuser = {}
    free = [(4, None)] if p.spare else []
    for i, (t, s) in enumerate(per):
        if (t - off[s]) % 16 == 0:
            r = rnd(t, s)
            if r == 0: obuf[(s, 0)] = s
            else:
                free.append((obuf[(s, r - 1)], (s, r - 1)))
                b, prevuser = free.pop(0)
                obuf[(s, r)] = b
                if prevuser is not None: nextuser[prevuser] = i
    Oreg = lambda s, r, db: bufs[obuf[(s, r)]][0] + 4 * db
    G = Gaps()
    assert off[0] == off[1] and off[2] == off[3]
    Lq = lambda s, r: V_L + 8 * (r % 2) + 4 * (s // 2)
    qs, qe, ps, pe, sm = {}, {}, {}, {}, {}
    def emit_pv(i):
        t, s = per[i]; r = rnd(t, s)
        fresh = (t - off[s]) % 16 == 0
        if i % 2 == 1:
            d = Lq(s, r)
            sm[i] = G.add(I(f'v_smfmac_f32_16x16x64_bf16 {R("v",d,4)}, {R("v",V_ONE,4)}, {R("v",V_P,8)}, v{V_IDX}', 'mfma',
                            rd=regs('v', V_ONE, 4) + regs('v', V_P, 8) + [('v', V_IDX)], wr=regs('v', d, 4), srcc=regs('v', d, 4)))
            G.base[sm[i]] = 1
        for db in range(8):
            d = ('v', Oreg(s, r, db))
            k = G.add(mfma16(d, ('a', A_V + 32 * (t % 2) + 4 * db), ('v', Preg(i)), None if fresh else d))
            if db == 0: ps[i] = k
        pe[i] = k
    for i, (t, s) in enumerate(per):
        assert s % 2 == i % 2
        for kb in range(2):
            for j in range(4):
                d = ('v', Sreg(i, kb))
                k = G.add(mfma16(d, ('a', A_K + 32 * (t % 2) + 16 * kb + 4 * j), ('a', qreg(s, rnd(t, s)) + 4 * j), None if j == 0 else d))
                if kb == 0 and j == 0: qs[i] = k
        qe[i] = k
        if i > 0: emit_pv(i - 1)
    emit_pv(NP - 1)
    NG = len(G.bb)
    ex = lambda r: valu(f'v_exp_f32 v{r}, v{r}', [r], [r], cost=2, kind='trans')
    cv = lambda d, a, b: valu(f'v_cvt_pk_bf16_f32 v{d}, v{a}, v{b}', [a, b], [d])
    for i in range(NP):
        a, b, pp = Sreg(i, 0), Sreg(i, 1), Preg(i)
        if i > 0:
            g = ps[i - 1]
            G.put(qs[i] + 7, ex(a))
            for k in range(1, 4): G.put(g + 2 * k - 1, ex(a + k))
            G.put(g + 2, cv(pp, a, a + 1)); G.put(g + 6, cv(pp + 1, a + 2, a + 3))
            G.put(g + 7, ex(b))
        if i < NP - 1:
            g1 = qs[i + 1]
            for k in range(1, 4): G.put(g1 + 2 * k - 1, ex(b + k))
            if i > 0: G.put(g1 + 4, cv(pp + 2, b, b + 1))
            G.put(g1 + 6, cv(pp + 3, b + 2, b + 3))
    a, b, pp = Sreg(0, 0), Sreg(0, 1), Preg(0)
    G.place([ex(a + k) for k in range(4)] + [cv(pp, a, a + 1), cv(pp + 1, a + 2, a + 3), ex(b)], qs[0] + 7, qs[1] + 5)
    G.put(qs[1] + 6, cv(pp + 2, b, b + 1))
    b, pp = Sreg(NP - 1, 1), Preg(NP - 1)
    G.place([ex(b + k) for k in range(1, 4)] + [cv(pp + 3, b + 2, b + 3)], ps[NP - 2] + 4, pe[NP - 2])
    G.put(pe[NP - 2], cv(pp + 2, b, b + 1))

    A = {t: qs[first[t] + 1] for t in range(T)}
    At = lambda t: 0 if t < 0 else (A[t] if t < T else NG - 1)
    def vslot(t): return LDS_K + 8192 * (t + 3) if t <= 12 else 8192 * (t % 4)
    def kread(u):
        tile = u % 16; st = tile // 8; o = []
        for kb in range(2):
            for j in range(4):
                d = A_K + 32 * (u % 2) + 16 * kb + 4 * j
                o.append(I(f'ds_read_b128 {R("a",d,4)}, v{V_KA+4*st+j} offset:{(tile%8)*8192+kb*4096}', 'ds_rd',
                           rd=[('v', V_KA + 4 * st + j)], wr=regs('a', d, 4), grp=('K', u)))
        return o
    vbase = [0]
    def vread(t):
        o = []
        sl = vslot(t); nb = sl // 65536 * 65536
        if nb != vbase[0]:
            dlt = (nb - vbase[0]) & 0xffffffff
            for m in range(4): o.append(valu(f'v_add_u32 v{V_VA+m}, 0x{dlt:x}, v{V_VA+m}', [V_VA + m], [V_VA + m]))
            vbase[0] = nb
        for db in range(8):
            for kb in range(2):
                d = A_V + 32 * (t % 2) + 4 * db + 2 * kb
                o.append(I(f'ds_read_b64_tr_b16 {R("a",d,2)}, v{V_VA+db//2} offset:{sl-nb+kb*4096+(db&1)*(32 if p.vexp else 8)}', 'ds_rd',
                           rd=[('v', V_VA + db // 2)], wr=regs('a', d, 2), grp=('Vr', t), tok=('Vr', t)))
        return o
    def vdma(t):
        o = [salu(f's_add_u32 m0, s{S_WV}, 0x{vslot(t):x}', wr=[('s', 'm0')])]
        for h in range(2):
            o.append(I(f'buffer_load_dwordx4 v{V_VG}, s[{S_V}:{S_V+3}], s{S_KT+t%16} offen offset:{1024*h}{p.vpol[min(t//16,2)]} lds', 'vm_dma',
                       rd=[('v', V_VG), ('s', 'm0')], tok=('V', t)))
        return o
    def qdma(s):
        o = [salu(f's_add_u32 m0, s{S_W4}, 0x{LDS_ST+16384*s:x}', wr=[('s', 'm0')])]
        for h in range(4):
            o.append(I(f'buffer_load_dwordx4 v{V_QG+h}, s[{S_Q}:{S_Q+3}], s{S_QB+s} offen offset:{1024*h}{p.qpol} lds', 'vm_dma',
                       rd=[('v', V_QG + h), ('s', 'm0')], tok=('Qd', s)))
        return o
    def qread(s):
        o = []
        for j in range(4):
            d = qreg(s, 0) + 4 * j
            o.append(I(f'ds_read_b128 {R("a",d,4)}, v{V_QA+j} offset:{16384*s}', 'ds_rd', rd=[('v', V_QA + j)], wr=regs('a', d, 4),
                       grp=('Qr', s), need=[('Qd', s)]))
        return o
    def kload(u):
        o = []
        for h in range(2):
            d = V_KR + 8 * (u % NKB) + 4 * h
            o.append(I(f'buffer_load_dwordx4 {R("v",d,4)}, v{V_KG+h}, s[{S_K}:{S_K+3}], s{S_KT+u} offen{p.kpol}', 'vm_ld',
                       rd=[('v', V_KG + h)], wr=regs('v', d, 4), grp=('Kraw', u)))
        return o
    kwbase = [0]
    def kscale(u):
        o = []
        nb = u // 8 * 65536
        if nb != kwbase[0]:
            o.append(valu(f'v_add_u32 v{V_KW}, 0x10000, v{V_KW}', [V_KW], [V_KW])); kwbase[0] = nb
        for h in range(2):
            d = V_KR + 8 * (u % NKB) + 4 * h
            for e in range(0, 4, 2):
                t0 = V_T + 4 * ((e // 2) % 2)
                for x in range(2):
                    o.append(valu(f'v_lshlrev_b32 v{t0+2*x}, 16, v{d+e+x}', [d + e + x], [t0 + 2 * x]))
                    o.append(valu(f'v_and_b32 v{t0+2*x+1}, 0xffff0000, v{d+e+x}', [d + e + x], [t0 + 2 * x + 1]))
                for x in range(4):
                    o.append(valu(f'v_mul_f32 v{t0+x}, v{V_C}, v{t0+x}', [V_C, t0 + x], [t0 + x]))
                for x in range(2):
                    o.append(cv(d + e + x, t0 + 2 * x, t0 + 2 * x + 1))
            o.append(I(f'ds_write_b128 v{V_KW}, {R("v",d,4)} offset:{(u%8)*8192+h*4096}', 'ds_wr',
                       rd=[('v', V_KW)] + regs('v', d, 4), cost=4, tok=('Kw', u)))
        return o
    def qload(s, r):
        n = 4 * r + s; o = []
        for j in range(4):
            d = qreg(s, r) + 4 * j
            o.append(I(f'buffer_load_dwordx4 {R("a",d,4)}, v{V_QO}, s[{S_Q}:{S_Q+3}], s{S_QB+n} offen offset:{64*j}{p.qpol if r < 2 else p.q2pol}',
                       'vm_ld', rd=[('v', V_QO)], wr=regs('a', d, 4), grp=('Q', s, r)))
        return o
    def epilogue(s, r, lds=False, pk=False):
        n = 4 * r + s; l = Lq(s, r) + 2 * (s % 2) - 2; o = []
        o.append(valu(f'v_add_f32 v{l+3}, v{l+2}, v{l+3}', [l + 2, l + 3], [l + 3]))
        o.append(valu(f'v_rcp_f32 v{l+2}, v{l+3}', [l + 3], [l + 2], cost=2, kind='trans'))
        o.append(valu(f'v_subrev_u32 v{l+3}, 0x{L_LO:x}, v{l+3}', [l + 3], [l + 3]))
        o.append(valu(f'v_max_u32 v{V_BAD}, v{V_BAD}, v{l+3}', [V_BAD, l + 3], [V_BAD]))
        for m in range(4):
            b = Oreg(s, r, 2 * m)
            if pk:
                for x in range(0, 8, 2):
                    o.append(valu(f'v_pk_mul_f32 {R("v",b+x,2)}, {R("v",b+x,2)}, {R("v",l+2,2)} op_sel_hi:[1,0]', [l + 2, b + x, b + x + 1], [b + x, b + x + 1]))
            else:
                for x in range(8): o.append(valu(f'v_mul_f32 v{b+x}, v{l+2}, v{b+x}', [l + 2, b + x], [b + x]))
            for x in range(4): o.append(cv(b + x, b + 2 * x, b + 2 * x + 1))
            if lds:
                o.append(I(f'ds_write_b128 v{V_QA+m}, {R("v",b,4)} offset:{16384*s}', 'ds_wr', rd=[('v', V_QA + m)] + regs('v', b, 4), cost=4))
            else:
                o.append(I(f'buffer_store_dwordx4 {R("v",b,4)}, v{V_QO}, s[{S_O}:{S_O+3}], s{S_QB+n} offen offset:{64*m}{p.opol[r]}',
                           'vm_st', rd=[('v', V_QO)] + regs('v', b, 4), cost=3))
        if lds:
            for i in range(4):
                b = Oreg(s, r, 2 * i + 1)
                o.append(I(f'ds_read_b128 {R("v",b,4)}, v{V_LIN} offset:{16384*s+1024*i}', 'ds_rd', rd=[('v', V_LIN)], wr=regs('v', b, 4)))
            for i in range(4):
                b = Oreg(s, r, 2 * i + 1)
                o.append(I(f'buffer_store_dwordx4 {R("v",b,4)}, v{V_QG+i}, s[{S_O}:{S_O+3}], s{S_QB+n} offen offset:{1024*i}{p.opol[r]}',
                           'vm_st', rd=[('v', V_QG + i)] + regs('v', b, 4), cost=3))
        return o
    nst = [1]
    def stamp(final=False):
        if not p.stamps or (p.light and not final): return []
        k = nst[0]; nst[0] += 1
        assert k < 64
        return [I('s_memtime s[60:61]', 'salu'), I('s_memrealtime s[62:63]', 'salu'), I('s_waitcnt lgkmcnt(0)', 'wait'),
                I(f'v_writelane_b32 v{V_ST0}, s60, {k}', 'salu'), I(f'v_writelane_b32 v{V_ST1}, s62, {k}', 'salu')]
    pub, wr, kwin = {}, {}, {}
    for u in range(1, T):
        t = u - 1
        hi = qs[first[u]] - 1
        if u < 16 and len(active[t]) >= 3:
            pub[u] = t; lo = A[t]
        else:
            if u < 16: pub[u] = t - 1
            lo = qs[first[t]]
        kwin[u] = (lo, hi - 6 if hi - lo > 20 else hi)
    pub[0] = -1
    for u in range(16): wr[u] = pub[u] - 1
    for u in range(16): assert wr[u] >= u - 3
    pro1, pro = [], []
    cur = pro1
    cur += stamp()
    dK, dV, dQ, dS, dR = set(), set(), set(), set(), set()
    for tok in p.pro.split(','):
        c = tok[0]
        if c == '|': cur = pro; continue
        if c == 'T': cur += stamp(); continue
        if c == 'B':
            assert all(u in dS for u in range(16) if pub[u] < 0) and 0 in dV
            cur.append(I('s_barrier', 'barrier', need=[('Kw', u) for u in dS] + [('V', 0)]))
            cur += kread(0); continue
        if c == 'W': cur += vread(0); continue
        if c == 'C': cur.append(I('@CHAIN', 'label')); continue
        n = int(tok[1:])
        if c == 'K':
            assert n < NKB or (n - NKB) in dS
            dK.add(n); cur += kload(n)
        elif c == 'V': dV.add(n); cur += vdma(n)
        elif c == 'Q': dQ.add(n); cur += qdma(n)
        elif c == 'S': assert n in dK; dS.add(n); cur += kscale(n)
        elif c == 'R': assert n in dQ; dR.add(n); cur += qread(n)
    assert 0 in dR and 1 in dV
    two = lambda t: p.bar2 and t >= p.bar2
    for t in range(T - 1):
        need = [('V', t + 1), ('Vr', t)] + [('Kw', u) for u in range(16) if pub[u] == t]
        if two(t):
            if (t - p.bar2) % 2: continue
            need += [('V', t + 2), ('Vr', t - 1)]
        if t < p.stfirst or t % p.stevery == 0:
            for x in stamp(): G.put(A[t], x)
        if t > 0: G.put(A[t] - 1, I('', 'anchor', need=need))
        G.put(A[t], I('s_barrier', 'barrier', need=need))
        if p.bargap: G.block.add(A[t])
    S = Sched(G, p.SSP, p.VSP, p.VAS)
    for t in range(T - 1):
        lo, hi = A[t], A[t + 1] - 1
        S.chain(kread(t + 1), *kwin[t + 1])
        S.chain(vread(t + 1), lo, hi - 8 if hi - lo > 30 else hi - 2)
    dm = []
    nv = 0
    for t in range(T):
        if t in dV: continue
        w = t - 1 - DV if t <= 16 else t - 4
        if two(w) and (w - p.bar2) % 2: w += 1
        w = max(w, nv // 2 - 1); nv += 1
        if 5 <= t <= 12:
            s = (t - 5) // 2
            w = max(w, off[s] + (1 if s > 0 else 0))
        assert w <= t - 2, (t, w)
        dm.append((w, t - 1, 'V', t))
    for s in range(4):
        if s not in dQ: dm.append((max(-1, off[s] - p.DQ0), off[s] - 0.5, 'Q', s))
    dm.sort()
    prev = None; qd = {}
    for (w, _, c, n) in dm:
        js = S.chain(vdma(n) if c == 'V' else qdma(n), At(w), max(At(w) + 2, min(At(w) + p.DMAW, At(w + 1) - 1)), after=prev)
        if At(w + 1) - At(w) > 8: S.dep(js[0], js[1], 1)
        prev = js[-1]
        if c == 'Q': qd[n] = prev
    for s in range(4):
        if s in dR: continue
        i0 = per.index((off[s], s))
        js = S.chain(qread(s), max(0, qs[i0] - p.QRW), qs[i0] - 4)
        if s in qd: S.dep(qd[s], js[0], 1)
    kiss = {}
    nk = 0
    for u in range(16):
        if u in dK: kiss[u] = -2
        else:
            kiss[u] = max(wr[u] - DK, nk // 2 - 1); nk += 1
    kst = {'w': {}, 'r': {}, 'dsw': []}
    ev = [(u - NKB + 0.5, 'L', u) for u in range(16) if u not in dK] + [(u, 'S', u) for u in range(16) if u not in dS]
    for _, c, u in sorted(ev):
        if c == 'L':
            js = S.auto(kload(u), At(kiss[u]), At(kiss[u] + 1) + 20, state=kst)
            S.dep(js[0], js[1])
            continue
        dl = At(pub[u]) - (6 if At(pub[u]) - At(pub[u] - 1) > 20 else 2)
        rel = min(At(kiss[u] + p.KLAT), At(wr[u]))
        nw = 0
        big = At(pub[u]) - At(pub[u] - 1) > 40
        for j in S.auto(kscale(u), rel, dl, state=kst):
            if j.ins.kind == 'ds_wr':
                j.rel = max(j.rel, At(u - 3))
                if big: j.dl = At(pub[u]) - (p.KW1 if nw == 0 else p.KW2)
                nw += 1
    for r in (1, 2):
        items = []
        for s in range(4): items += [(x, off[s] + 16 * r) for x in qload(s, r)]
        lo = At(16 * r - (p.DQ if r == 1 else p.DQ2)); hi = At(off[3] + 16 * r - 4) if r == 1 else At(32 - p.QH2)
        prevj = None
        for k, (x, need) in enumerate(items):
            rel = lo + (hi - lo) * k // 16
            if p.bar2:
                w = max(t for t in range(T) if At(t) <= rel)
                if two(w) and (w - p.bar2) % 2: rel = At(w + 1) + 6
            if p.qpair > 1: rel = lo + (hi - lo) * (k // p.qpair * p.qpair) // 16
            j = S.add(x, min(rel, At(need - 4)), At(need - 3), strided=(k % p.qpair == 0 or p.qpairsp))
            if prevj: S.dep(prevj, j)
            prevj = j
    if p.QT >= 0:
        for k in range(4):
            w = p.QT + k * p.QTS
            S.add(I(f'buffer_load_dword v{V_X+1+k%3}, v{V_X}, s[{S_Q}:{S_Q+3}], s{S_QB+8+k} offen{p.tpol}', 'vm_ld', rd=[('v', V_X)], wr=[('v', V_X + 1 + k % 3)]),
                  At(w) + 10, At(w + 1), strided=True)
    tail = []; epi0 = {}; est = {'w': {}, 'r': {}, 'dsw': []}
    for i, (t, s) in enumerate(per):
        if (t - off[s]) % 16 == 15:
            r = rnd(t, s)
            lo = max(pe[i], sm[i | 1]) + 3
            lds = p.taillds and r == 2
            if (s, r) in nextuser: hi = ps[nextuser[(s, r)]] - 2
            else: hi = min(NG - 1, lo + (p.EW if r < 2 else 500))
            if hi - lo < 12: tail += epilogue(s, r, lds, pk=p.pk); continue
            if r == 2: hi = min(hi, lo + p.TW[s])
            else: hi = min(hi, lo + p.EW)
            js = S.auto(epilogue(s, r, lds), lo, hi, strided_kinds=() if lds else ('vm_st',), state=est)
            est['dsw'] = []
            if r == 0: epi0[s] = [j for j in js if j.ins.kind == 'valu']
            if lds:
                rds = [j for j in js if j.ins.kind == 'ds_rd']; sts = [j for j in js if j.ins.kind == 'vm_st']
                for x in range(4): S.dep(rds[x], sts[x], min(6, (hi - lo) // 4))
            else:
                st = [j for j in js if j.ins.kind == 'vm_st']
                for m, j in enumerate(st): j.dl = hi - min(17, (hi - lo) // 4) * (3 - m)
    for s in range(4):
        i2 = per.index((off[s] + 32, s | 1))
        for x in range(2):
            rr = Lq(s, 0) + 2 * (s % 2) + x
            j = S.add(valu(f'v_mov_b32 v{rr}, 0', [], [rr]), At(off[s] + 18), sm[i2] - 2)
            for q in epi0[s]: S.dep(q, j, 0)
    S.run()
    if p.pkpos:
        for k in range(NG):
            sl, mm, v = G.g[k]
            pos = sum(x.cost for x in mm); out = []; i = 0
            while i < len(v):
                x = v[i]
                if pos >= p.pkpos and i + 1 < len(v) and x.txt.startswith('v_mul_f32') and v[i + 1].txt.startswith('v_mul_f32'):
                    d0 = x.wr[0][1]; d1 = v[i + 1].wr[0][1]; c0 = x.rd[0][1]; c1 = v[i + 1].rd[0][1]
                    if d0 % 2 == 0 and d1 == d0 + 1 and c0 == c1 and c0 % 2 == 0:
                        out.append(valu(f'v_pk_mul_f32 {R("v",d0,2)}, {R("v",d0,2)}, {R("v",c0,2)} op_sel_hi:[1,0]', [c0, d0, d1], [d0, d1]))
                        pos += 1; i += 2; continue
                out.append(x); pos += x.cost; i += 1
            G.g[k][2] = out
    body = G.linear()
    if p.verbose:
        print('gaps', NG, 'est cycles', G.est_cycles(), file=sys.stderr)
        ov = []
        for t in range(T):
            lo, hi = A[t], (A[t + 1] if t + 1 < T else NG)
            ov.append('%d/%d' % (sum(max(0, G.load(k) - 2) for k in range(lo, hi)), sum(max(0, 2 - G.load(k)) for k in range(lo, hi))))
        print('overflow/free slots per window:', ' '.join(ov), file=sys.stderr)
    tail += stamp()
    if p.stamps: tail += [I('s_waitcnt vmcnt(0)', 'wait')] + stamp(True)
    mark1 = I('', 'label'); mark2 = I('', 'label')
    seq = pro1 + [mark1] + pro + [mark2] + body + tail
    seq = insert_waits(seq)
    seq = [x for x in seq if x.kind != 'anchor']
    if p.ko:
        nb = 0; out = []
        for x in seq:
            if x.kind == 'barrier': nb += 1
            if nb > 38:
                if 'bar' in p.ko and x.kind == 'barrier': continue
                if 'dma' in p.ko and x.kind == 'vm_dma': continue
                if 'vr' in p.ko and x.txt.startswith('ds_read_b64'): continue
                if 'kr' in p.ko and x.txt.startswith('ds_read_b128'): continue
                if 'wait' in p.ko and x.kind == 'wait' and 'lgkmcnt(0)' not in x.txt: continue
                if 'exp' in p.ko and x.kind == 'trans': continue
            out.append(x)
        seq = out
    seq = fix_hazards(seq)
    k1 = seq.index(mark1); k2 = seq.index(mark2)
    return seq[:k1], seq[k1 + 1:k2], seq[k2 + 1:], nst[0]

HEADER = f'''; Kernarg layout for this problem (48 bytes, ptrs only, base s[0:1]):
; @launch grid=(256,1,1) block=(256,1,1) lds=163840
'''

def setup(p):
    o = []; a = o.append; x = V_X
    if p.stamps: a('s_memtime s[84:85]'); a('s_memrealtime s[86:87]')
    a('s_cmp_ge_u32 s2, 256'); a('s_cbranch_scc1 L_end')
    a('s_load_dwordx4 s[4:7], s[0:1], 0')
    a('s_load_dwordx4 s[28:31], s[0:1], 16')
    if p.stamps: a('s_load_dwordx2 s[64:65], s[0:1], 40')
    if p.pf:
        a('s_getpc_b64 s[52:53]'); a('L_pc:')
        a('s_lshr_b32 s54, s2, 3'); a(f's_and_b32 s54, s54, {p.pf-1}'); a('s_lshl_b32 s54, s54, 15')
        a(f'v_lshl_add_u32 v{V_T}, v0, 7, s54'); a(f'v_min_u32 v{V_T}, L_fb-L_pc, v{V_T}')
        a(f'v_mov_b32 v{V_T+1}, s53'); a(f'v_add_co_u32 v{V_T}, vcc, s52, v{V_T}'); a('s_nop 1'); a(f'v_addc_co_u32 v{V_T+1}, vcc, 0, v{V_T+1}, vcc')
        a(f'global_load_dword v{V_T+2}, v[{V_T}:{V_T+1}], off')
    a(f'v_lshrrev_b32 v{x}, 6, v0')
    a('v_and_b32 v0, 63, v0')
    a(f'v_readfirstlane_b32 s{S_WAVE}, v{x}')
    a('s_and_b32 s26, s2, 7'); a('s_lshr_b32 s27, s2, 4'); a('s_lshl_b32 s27, s27, 3'); a('s_or_b32 s26, s26, s27')
    a('s_bfe_u32 s27, s2, 0x10003')
    a('s_lshl_b32 s48, s26, 1'); a('s_add_u32 s48, s48, s27'); a('s_lshl_b32 s48, s48, 2'); a(f's_add_u32 s48, s48, s{S_WAVE}')
    if p.rotq:
        a('s_mul_i32 s51, s48, 0x9e3779b1'); a('s_mul_hi_u32 s51, s51, 12'); a('s_lshl_b32 s51, s51, 12')
    a('s_mul_i32 s48, s48, 49152')
    a('s_lshl_b32 s49, s26, 17')
    a(f's_lshl_b32 s{S_WV}, s{S_WAVE}, 11'); a(f's_lshl_b32 s{S_W4}, s{S_WAVE}, 12')
    if p.rotq:
        a(f's_mov_b32 s{S_QB}, s51')
        for t in range(1, 12):
            a(f's_add_u32 s{S_QB+t}, s{S_QB+t-1}, 0x1000'); a(f's_cmp_lt_u32 s{S_QB+t}, 0xc000'); a(f's_cselect_b32 s{S_QB+t}, s{S_QB+t}, 0')
    else:
        for t in range(12): a(f's_mov_b32 s{S_QB+t}, {4096*t}')
    if p.rotk:
        a('s_mul_i32 s51, s26, 0x9e3779b1'); a('s_lshr_b32 s51, s51, 28'); a(f's_lshl_b32 s{S_KT}, s51, 13')
        for t in range(1, 16):
            a(f's_add_u32 s{S_KT+t}, s{S_KT+t-1}, 0x2000'); a(f's_and_b32 s{S_KT+t}, s{S_KT+t}, 0x1e000')
    else:
        for t in range(16): a(f's_mov_b32 s{S_KT+t}, {8192*t}')
    a(f'v_and_b32 v{x}, 15, v0')
    a(f'v_lshrrev_b32 v{x+1}, 4, v0')
    a(f's_lshl_b32 s50, s{S_WAVE}, 10')
    a(f'v_lshl_add_u32 v{V_KG}, v0, 4, s50'); a(f'v_add_u32 v{V_KG+1}, 0x1000, v{V_KG}')
    a(f'v_lshlrev_b32 v{x+2}, 2, v{x+1}'); a(f'v_xor_b32 v{x+2}, v{x+2}, v{x}'); a(f'v_lshlrev_b32 v{x+2}, 4, v{x+2}')
    a(f'v_lshl_add_u32 v{x+2}, v{x+1}, 8, v{x+2}'); a(f'v_add_u32 v{V_VG}, s{S_WV}, v{x+2}')
    a(f'v_xor_b32 v{x+2}, v{x+1}, v{x}'); a(f'v_lshlrev_b32 v{x+3}, 8, v{x+1}')
    for i in range(4):
        a(f'v_xor_b32 v{V_QG+i}, {4*i}, v{x+2}'); a(f'v_lshl_add_u32 v{V_QG+i}, v{V_QG+i}, 4, v{x+3}')
    for sr, n in ((S_K, 131072), (S_V, 131072), (S_Q, 49152), (S_O, 49152)):
        a(f's_mov_b32 s{sr+2}, {n}'); a(f's_mov_b32 s{sr+3}, 0x20000')
    a('s_waitcnt lgkmcnt(0)')
    for (sr, lo, offs) in ((S_K, 6, 49), (S_V, 28, 49), (S_Q, 4, 48), (S_O, 30, 48)):
        a(f's_add_u32 s{sr}, s{lo}, s{offs}'); a(f's_addc_u32 s{sr+1}, s{lo+1}, 0')
    return o

def setup2(p):
    o = []; a = o.append; x = V_X
    a(f'v_lshlrev_b32 v{V_QO}, 8, v{x}'); a(f'v_lshl_add_u32 v{V_QO}, v{x+1}, 4, v{V_QO}')
    a(f's_lshl_b32 s50, s{S_WAVE}, 2')
    a(f'v_add_u32 v{x+2}, s50, v{x+1}'); a(f'v_xor_b32 v{x+3}, v{x+2}, v{x}'); a(f'v_lshlrev_b32 v{x+3}, 4, v{x+3}')
    a(f'v_lshl_add_u32 v{x+3}, v{x+2}, 8, v{x+3}'); a(f'v_add_u32 v{V_KW}, 0x{LDS_K:x}, v{x+3}')
    a(f'v_xor_b32 v{x+3}, v{x+1}, v{x}')
    for j in range(4):
        a(f'v_xor_b32 v{x+2}, {4*j}, v{x+3}'); a(f'v_lshlrev_b32 v{x+2}, 4, v{x+2}')
        a(f'v_lshl_add_u32 v{x+2}, v{x}, 8, v{x+2}'); a(f'v_add_u32 v{V_KA+j}, 0x{LDS_K:x}, v{x+2}')
        a(f'v_add_u32 v{V_KA+4+j}, 0x{LDS_K+65536:x}, v{x+2}')
        a(f'v_add_u32 v{V_QA+j}, s{S_W4}, v{V_KA+4+j}')
    a(f's_add_u32 s50, s{S_W4}, 0x{LDS_ST:x}'); a(f'v_lshl_add_u32 v{V_LIN}, v0, 4, s50')
    a(f'v_lshrrev_b32 v{x+2}, 2, v0'); a(f'v_and_b32 v{x+3}, 3, v{x+2}'); a(f'v_and_b32 v{x}, 3, v0')
    a(f'v_lshlrev_b32 v{x}, 4, v{x}'); a(f'v_lshl_add_u32 v{x}, v{x+2}, 8, v{x}')
    if p.vexp:
        a(f'v_and_b32 v{x+3}, 7, v{x+2}'); a(f'v_and_b32 v{x}, 3, v0'); a(f'v_lshlrev_b32 v{x}, 3, v{x}'); a(f'v_lshl_add_u32 v{x}, v{x+2}, 8, v{x}')
    for m in range(4):
        if p.vexp: a(f'v_xor_b32 v{x+2}, {2*m}, v{x+3}'); a(f'v_lshl_add_u32 v{V_VA+m}, v{x+2}, 5, v{x}')
        else: a(f'v_xor_b32 v{x+2}, {m}, v{x+3}'); a(f'v_lshl_add_u32 v{V_VA+m}, v{x+2}, 6, v{x}')
    a(f'v_lshrrev_b32 v{x+2}, 4, v0'); a(f'v_xor_b32 v{x+2}, v{x+2}, v0'); a(f'v_and_b32 v{x+2}, 2, v{x+2}')
    a(f'v_cmp_eq_u32 vcc, 0, v{x+2}'); a(f'v_mov_b32 v{x+3}, 0x3f803f80'); a(f'v_and_b32 v{x+2}, 1, v0')
    for k in range(4): a(f'v_cndmask_b32 v{V_ONE+k}, 0, v{x+3}, vcc')
    a(f'v_cmp_eq_u32 vcc, 0, v{x+2}'); a(f'v_mov_b32 v{x+3}, 0x44444444'); a(f'v_mov_b32 v{V_IDX}, 0xeeeeeeee')
    a(f'v_cndmask_b32 v{V_IDX}, v{V_IDX}, v{x+3}, vcc')
    for k in range(16): a(f'v_mov_b32 v{V_L+k}, 0')
    a(f'v_mov_b32 v{V_C}, 0x{CSC:x}'); a(f'v_mov_b32 v{V_BAD}, 0')
    a(f'v_lshlrev_b32 v{V_X}, 6, v0')
    return o

def fallback(p):
    o = []; a = o.append
    S0, S1, PP, M, O, L = V_S, V_S + 4, V_P, V_T, V_O, V_L
    def qk():
        for kb in range(2):
            for j in range(4):
                a(f'buffer_load_dwordx4 {R("a",A_K+16*kb+4*j,4)}, v{V_QO+kb}, s[{S_K}:{S_K+3}], s56 offen offset:{64*j}')
    def qkm():
        for kb in range(2):
            for j in range(4):
                d = R('v', S0 + 4 * kb, 4)
                a(f'v_mfma_f32_16x16x32_bf16 {d}, {R("a",A_K+16*kb+4*j,4)}, {R("a",4*j,4)}, ' + ('0' if j == 0 else d))
        a('s_nop 7'); a('s_nop 1')
    a('L_fb:')
    a('s_waitcnt vmcnt(0) lgkmcnt(0)')
    a('s_barrier')
    a(f's_lshl_b32 s57, s{S_WAVE}, 13')
    a(f'v_subrev_u32 v{V_VG}, s{S_WV}, v{V_VG}')
    for m in range(4): a(f'v_add_u32 v{V_VA+m}, s57, v{V_VA+m}')
    a(f'v_xor_b32 v{M+2}, 16, v0'); a(f'v_lshlrev_b32 v{M+2}, 2, v{M+2}')
    a(f'v_xor_b32 v{M+3}, 32, v0'); a(f'v_lshlrev_b32 v{M+3}, 2, v{M+3}')
    a(f'v_add_u32 v{V_QO+1}, 0x1000, v{V_QO}')
    for k in range(4): a(f'v_mov_b32 v{V_ONE+k}, 0x3f803f80')
    a('s_mov_b32 s55, 0')
    a('L_fb_q:')
    for j in range(4): a(f'buffer_load_dwordx4 {R("a",4*j,4)}, v{V_QO}, s[{S_Q}:{S_Q+3}], s55 offen offset:{64*j}')
    a(f'v_mov_b32 v{M}, 0xff800000')
    a('s_mov_b32 s56, 0')
    a('L_fb_max:')
    qk(); a('s_waitcnt vmcnt(0)'); qkm()
    for k in range(0, 8, 2): a(f'v_max3_f32 v{M}, v{S0+k}, v{S0+k+1}, v{M}')
    a('s_add_u32 s56, s56, 8192'); a('s_cmp_lt_u32 s56, 131072'); a('s_cbranch_scc1 L_fb_max')
    for k in (2, 3):
        a(f'ds_bpermute_b32 v{M+1}, v{M+k}, v{M}'); a('s_waitcnt lgkmcnt(0)'); a(f'v_max_f32 v{M}, v{M}, v{M+1}')
    a(f'v_mul_f32 v{M}, v{V_C}, v{M}')
    for k in range(32): a(f'v_mov_b32 v{O+k}, 0')
    for k in range(4): a(f'v_mov_b32 v{L+k}, 0')
    a('s_mov_b32 s56, 0')
    a('L_fb_pv:')
    qk()
    for h in range(2):
        a(f's_add_u32 m0, s57, {4096*h}'); a(f's_add_u32 s58, s56, {4096*h}')
        for i in range(4): a(f'buffer_load_dwordx4 v{V_VG}, s[{S_V}:{S_V+3}], s58 offen offset:{1024*i} lds')
    a('s_waitcnt vmcnt(0)')
    for db in range(8):
        for kb in range(2):
            a(f'ds_read_b64_tr_b16 {R("a",A_V+4*db+2*kb,2)}, v{V_VA+db//2} offset:{kb*4096+(db&1)*8}')
    qkm()
    for k in range(8): a(f'v_fma_f32 v{S0+k}, v{S0+k}, v{V_C}, -v{M}')
    for k in range(8): a(f'v_exp_f32 v{S0+k}, v{S0+k}')
    a('s_nop 0')
    for k in range(4): a(f'v_cvt_pk_bf16_f32 v{PP+k}, v{S0+2*k}, v{S0+2*k+1}')
    a('s_waitcnt lgkmcnt(0)'); a('s_nop 1')
    for db in range(8):
        d = R('v', O + 4 * db, 4); a(f'v_mfma_f32_16x16x32_bf16 {d}, {R("a",A_V+4*db,4)}, {R("v",PP,4)}, {d}')
    d = R('v', L, 4); a(f'v_mfma_f32_16x16x32_bf16 {d}, {R("v",V_ONE,4)}, {R("v",PP,4)}, {d}')
    a('s_nop 7')
    a('s_add_u32 s56, s56, 8192'); a('s_cmp_lt_u32 s56, 131072'); a('s_cbranch_scc1 L_fb_pv')
    a('s_nop 7')
    a(f'v_rcp_f32 v{L+1}, v{L}'); a('s_nop 0')
    for k in range(32): a(f'v_mul_f32 v{O+k}, v{L+1}, v{O+k}')
    for m in range(4):
        b = O + 8 * m
        for x in range(4): a(f'v_cvt_pk_bf16_f32 v{b+x}, v{b+2*x}, v{b+2*x+1}')
        a(f'buffer_store_dwordx4 {R("v",b,4)}, v{V_QO}, s[{S_O}:{S_O+3}], s55 offen offset:{64*m}')
    a('s_waitcnt vmcnt(0)')
    a('s_add_u32 s55, s55, 4096'); a('s_cmp_lt_u32 s55, 49152'); a('s_cbranch_scc1 L_fb_q')
    return o

def isize(t):
    op = t.split()[0]
    if op.startswith(('v_mfma', 'v_smfmac', 'ds_', 'buffer_', 'global_', 'v_cvt_pk', 'v_writelane', 's_mem', 'v_lshl_add', 'v_max3', 'v_fma', 'v_pk')): return 8
    m = re.search(r'0x([0-9a-f]+)', t)
    return 8 if m and int(m.group(1), 16) > 64 else 4

def build(fn, p):
    pro1, pro, body, nst = gen(p)
    o = [HEADER.rstrip('\n'), '.amdgcn_target "amdgcn-amd-amdhsa--gfx950"', '.text', f'.globl {NAME}_kernel', '.p2align 8',
         f'.type {NAME}_kernel,@function', f'{NAME}_kernel:']
    o += setup(p)
    if p.stamps: o += [f'v_mov_b32 v{V_ST0}, s84', f'v_mov_b32 v{V_ST1}, s86']
    o += [x.txt for x in pro1]
    o += setup2(p)
    bt = [('PG', 0)]; offs = 4; pg = 1; prev = None
    for x in body:
        if offs >= 4096 * pg and prev is not None and (prev.kind == 'mfma' or offs >= 4096 * pg + 40):
            bt.append(('PG', pg)); offs += 4; pg += 1
        bt.append(x.txt); offs += isize(x.txt); prev = x
    npg = pg
    ch = ['s_mov_b64 vcc, -1']
    for w in range(3): ch += [f's_cmp_eq_u32 s{S_WAVE}, {w}', f's_cbranch_scc1 L_pg{w}']
    ch += ['s_branch L_pg3', 'L_ret:', 's_mov_b64 vcc, 0']
    txt = [x.txt for x in pro]
    if '@CHAIN' not in txt: txt.append('@CHAIN')
    for x in txt:
        if x == '@CHAIN': o += ch
        else: o.append(x)
    o += ['s_branch L_pg0', '.p2align 12']
    for x in bt:
        if isinstance(x, tuple):
            q = x[1]; o += [f'L_pg{q}:', f's_cbranch_vccnz ' + (f'L_pg{q+4}' if q + 4 < npg else 'L_ret')]
        else: o.append(x)
    if p.stamps and p.dbg:
        o += ['s_load_dwordx2 s[64:65], s[0:1], 32', 's_waitcnt lgkmcnt(0)', 's_mov_b32 s66, 64', 's_mov_b32 s67, 0x20000', f'v_lshlrev_b32 v{V_X}, 3, v0',
              f'v_not_b32 v{V_ST0}, v{V_ST1}',
              f'buffer_atomic_umax v{V_ST1}, v{V_X}, s[64:67], 0 offen', f'buffer_atomic_umax v{V_ST0}, v{V_X}, s[64:67], 0 offen offset:4']
    elif p.stamps:
        o += ['s_lshl_b32 s50, s2, 2', f's_add_u32 s50, s50, s{S_WAVE}', 's_lshl_b32 s50, s50, 9',
              's_mov_b32 s66, 0x100000', 's_mov_b32 s67, 0x20000', f'v_lshlrev_b32 v{V_X}, 2, v0',
              f'buffer_store_dword v{V_ST0}, v{V_X}, s[64:67], s50 offen', f'buffer_store_dword v{V_ST1}, v{V_X}, s[64:67], s50 offen offset:256']
    rng = 0 if p.forcefb else L_RANGE
    o += [f'v_cmp_lt_u32 vcc, 0x{rng:x}, v{V_BAD}', 's_nop 4', 's_cbranch_vccz L_end']
    o += fallback(p)
    o += ['L_end:', 's_endpgm', '.section .rodata,"a"', '.p2align 6', f'.amdhsa_kernel {NAME}_kernel',
          '  .amdhsa_next_free_vgpr 512', '  .amdhsa_next_free_sgpr 96', '  .amdhsa_accum_offset 256',
          '  .amdhsa_group_segment_fixed_size 0', '  .amdhsa_kernarg_size 48', '  .amdhsa_user_sgpr_count 2',
          '  .amdhsa_user_sgpr_kernarg_segment_ptr 1', '  .amdhsa_system_sgpr_workgroup_id_x 1', '.end_amdhsa_kernel']
    open(fn, 'w').write('\n'.join(o) + '\n')
    return nst

def parse(argv):
    ap = argparse.ArgumentParser()
    ap.add_argument('-o', default=f'cdna_kernels/{NAME}.s')
    ap.add_argument('--off', default='0,0,2,2')
    ap.add_argument('--stamps', action='store_true'); ap.add_argument('--stevery', type=int, default=1); ap.add_argument('--stfirst', type=int, default=0)
    for k, v in dict(DV=4, DK=4, DQ=10, DQ0=3, DQ2=13, QH2=2, KW1=14, KW2=12, pkpos=5, qpair=1, qpairsp=0, rotq=1, rotk=1, QT=-1, QTS=2, KLAT=3, pf=4, EW=300, bargap=1, bar2=0, SSP=17, VSP=6, VAS=0, DMAW=30, QRW=20).items(): ap.add_argument('--' + k, type=int, default=v)
    ap.add_argument('--pro', default='K0,K1,K2,V0,Q0,|,C,Q1,V1,S0,S1,K3,V2,B,R0,W,S2')
    ap.add_argument('--kpol', default='nt'); ap.add_argument('--vpol', default=',,'); ap.add_argument('--qpol', default='nt'); ap.add_argument('--opol', default='sc1,sc1,sc1')
    ap.add_argument('--nospare', action='store_true'); ap.add_argument('--taillds', action='store_true'); ap.add_argument('--pk', action='store_true')
    ap.add_argument('--vexp', action='store_true'); ap.add_argument('--TW', default='30,60,500,500'); ap.add_argument('--tpol', default=''); ap.add_argument('--q2pol', default='nt'); ap.add_argument('--light', action='store_true'); ap.add_argument('--dbg', action='store_true'); ap.add_argument('--ko', default=''); ap.add_argument('--forcefb', action='store_true'); ap.add_argument('-q', action='store_true')
    a = ap.parse_args(argv)
    pol = lambda x: (' ' + x.replace('+', ' ')).rstrip()
    a.off = tuple(int(x) for x in a.off.split(','))
    a.kpol = pol(a.kpol); a.tpol = pol(a.tpol); a.q2pol = pol(a.q2pol); a.qpol = pol(a.qpol); a.opol = tuple(pol(x) for x in a.opol.split(',')); a.vpol = tuple(pol(x) for x in a.vpol.split(','))
    if a.light: a.stamps = True
    a.TW = tuple(int(x) for x in a.TW.split(','))
    a.spare = not a.nospare; a.verbose = not a.q
    return a

if __name__ == '__main__':
    a = parse(sys.argv[1:])
    n = build(a.o, a)
    if a.stamps: print('stamps', n)
```
